```python
import torch

def _softmax(x, axis=-1):
    return torch.softmax(x, dim=axis)

def _gelu(x):
    return torch.nn.functional.gelu(x, approximate='tanh')

def _silu(x):
    return torch.nn.functional.silu(x)

def _sigmoid(x):
    return torch.sigmoid(x)

def _layernorm(x, axis=-1, eps=1e-05):
    m = x.mean(dim=axis, keepdim=True)
    v = x.var(dim=axis, keepdim=True, unbiased=False)
    return (x - m) / torch.sqrt(v + eps)

def _scatter_add(tgt, idx, src, axis=0):
    return tgt.clone().index_add_(axis, idx, src)

def _segment_sum(src, seg, n):
    out = torch.zeros((n,) + src.shape[1:], dtype=src.dtype)
    return out.index_add_(0, seg, src)

def _pad(x, pw):
    flat = tuple((v for pair in reversed(pw) for v in pair))
    return torch.nn.functional.pad(x, flat)
kernel_name = 'standalone__kv_cache_quant_pre_rope_vs_post_rope__prompt'

def setup_inputs():

    _w = lambda a: (lambda t: t.to(torch.bfloat16) if t.is_floating_point() else t)(torch.as_tensor(a))
    B, Sq, Skv = (1, 2048, 2048)
    H, Dh0 = (8, 128)
    G = 32 if 32 > 0 else Dh0
    G = max(2, G // 2 * 2)
    Dh = max(G, Dh0 // G * G)
    Skv = max(Skv, Sq)
    ng = Dh // G
    bits = 8 if 8 > 1 else 4
    bits = max(2, min(8, bits))
    qmax = (1 << bits) - 1
    half = Dh // 2
    inv = 1.0 / 10000.0 ** (torch.arange(half) / max(1, half))
    ang_k = torch.arange(Skv)[:, None] * inv[None, :]
    ang_q = torch.arange(Skv - Sq, Skv)[:, None] * inv[None, :]
    kc = torch.cat([torch.cos(ang_k), torch.cos(ang_k)], dim=-1)
    ks = torch.cat([torch.sin(ang_k), torch.sin(ang_k)], dim=-1)
    qc = torch.cat([torch.cos(ang_q), torch.cos(ang_q)], dim=-1)
    qs = torch.cat([torch.sin(ang_q), torch.sin(ang_q)], dim=-1)
    qk_i = torch.randint(0, qmax + 1, (B, H, Skv, Dh)).to(torch.int32)
    qv_i = torch.randint(0, qmax + 1, (B, H, Skv, Dh)).to(torch.int32)
    ksc = torch.abs((lambda *s: torch.randn(*s, dtype=torch.bfloat16) * 0.05)(B, H, Skv, ng)) * 0.1 + 0.01
    kzp = torch.full((B, H, Skv, ng), qmax / 2.0)
    vsc = torch.abs((lambda *s: torch.randn(*s, dtype=torch.bfloat16) * 0.05)(B, H, Skv, ng)) * 0.1 + 0.01
    vzp = torch.full((B, H, Skv, ng), qmax / 2.0)
    return {'q': _w((lambda *s: torch.randn(*s, dtype=torch.bfloat16) * 0.8)(B, H, Sq, Dh) * 0.5), 'qk': _w(qk_i), 'k_scales': _w(ksc), 'k_zeros': _w(kzp), 'qv': _w(qv_i), 'v_scales': _w(vsc), 'v_zeros': _w(vzp), 'q_cos': _w(qc), 'q_sin': _w(qs), 'k_cos': _w(kc), 'k_sin': _w(ks)}

def reference(q, qk, k_scales, k_zeros, qv, v_scales, v_zeros, q_cos, q_sin, k_cos, k_sin):
    B, H, Sq, Dh = q.shape
    ng = k_scales.shape[-1]
    G = Dh // ng
    half = Dh // 2
    ks = (lambda x, n, axis: torch.repeat_interleave(x, n, dim=axis))(k_scales, G, axis=-1)
    kz = (lambda x, n, axis: torch.repeat_interleave(x, n, dim=axis))(k_zeros, G, axis=-1)
    k = ((lambda x, dt: x.to(dt))(qk, q.dtype) - kz) * ks
    vs = (lambda x, n, axis: torch.repeat_interleave(x, n, dim=axis))(v_scales, G, axis=-1)
    vz = (lambda x, n, axis: torch.repeat_interleave(x, n, dim=axis))(v_zeros, G, axis=-1)
    v = ((lambda x, dt: x.to(dt))(qv, q.dtype) - vz) * vs
    k1 = k[..., :half].clone()
    k2 = k[..., half:].clone()
    krh = torch.concatenate([-k2, k1], axis=-1)
    kr = k * k_cos[None, None, :, :] + krh * k_sin[None, None, :, :]
    q1 = q[..., :half].clone()
    q2 = q[..., half:].clone()
    qrh = torch.concatenate([-q2, q1], axis=-1)
    qr = q * q_cos[None, None, :, :] + qrh * q_sin[None, None, :, :]
    logits = torch.einsum('bhqd,bhkd->bhqk', qr, kr) * float(Dh) ** (-0.5)
    attn = _softmax(logits, axis=-1)
    out = torch.einsum('bhqk,bhkd->bhqd', attn, v)
    return out
```

```python
import sys, math, struct, copy

MAINK = "standalone__kv_cache_quant_pre_rope_vs_post_rope__prompt_kernel"
HEADER = open("standalone__kv_cache_quant_pre_rope_vs_post_rope__prompt.s.ref").read().split("; Override launch")[0]

DOC = """;
; One launch, 256 workgroups x 4 waves (one wave per SIMD, 512 registers). Workgroup (h = wg & 7, t = wg >> 3):
;     completed, carrying three progress bits and the producer's XCC id. A wave uses a tile only after it has seen the
;  3. wave w runs all 64 q rows against key quarter w: S^T = K Q^T - m (m enters as the MFMA C operand), P = exp2(S^T),
;     O += P V, row sums by one more MFMA. K/V fragments stream L2 -> registers, no LDS or barrier in the loop.
"""
STAMP = 16 << 20
CSCALE = math.log2(math.e) / math.sqrt(128.0)
def f2u(x): return struct.unpack("<I", struct.pack("<f", x))[0]

class Asm:
    def __init__(self): self.L = []
    def __call__(self, s): self.L.append("  " + s.rstrip())
    def label(self, s): self.L.append(s + ":")
    def raw(self, s): self.L.append(s)
    def c(self, s): self.L.append("  ; " + s)
    def text(self): return "\n".join(self.L) + "\n"

def vr(b, n=1, f="v"): return "%s%d" % (f, b) if n == 1 else "%s[%d:%d]" % (f, b, b + n - 1)
def ar(b, n=1): return vr(b, n, "a")
def sp(b): return "s[%d:%d]" % (b, b + 1)

V_PD = 0
V_LANE, V_RHO, V_G, V_FA, V_FV, V_L16 = 2, 3, 4, 5, 6, 7
V_KO0, V_KO1, V_VO0, V_VO1 = 8, 9, 10, 11
V_S = 12; V_P = 28; V_NEGM = 36; V_O = 52; V_L = 180
V_XB = 241; V_OFF = 240
V_DUM = 6; V_CA = 242; V_ONE = 243; V_TM = 244; V_XA = 252; V_POLL = 255
A_RING = 0; A_Q = 128; A_ONE = 192; A_SEL = 196
S_STAGE = 4; S_VBD = 5; S_FT = 6; S_FW = 7
S_Q, S_QK, S_KSC, S_KZ, S_QV, S_VSC, S_VZ, S_QCOS, S_QSIN, S_KCOS, S_KSIN, S_OUT = 8, 10, 12, 14, 16, 18, 20, 22, 24, 26, 28, 30
S_DBG = 32; S_WS = 34; S_EX = 36; S_WK = 37; S_H = 38; S_T = 39
S_SRD = 40; S_OSRD = 44; S_SOFF = 48; S_CNT = 49; S_RETRY = 50; S_SELF = 51
S_J = 52; S_ROT = 53; S_FWK = 54; S_NPOLL = 55; S_P0K = 61; S_CS = 62
LDS_Q = 65536; LDS_K = 81920; LDS_CNT = 86016; LDS_TOTAL = 86048
vVA, vVB, vKA, vKB, vTA, vTB, vVS, vKS, vQA, vQB, vKO, vVO, vQL, vKL = range(12, 26)
TMP = 28; QF = 36; QOUT = 44
VRA = 52; VOA = 68; KRAW = 76; KTAB = 108; INV = 108; QRAW = 140; QTAB = 156
VSR = 188; KSR = 190; KP = 192; KBO = 192; VRB = 208; VOB = 224; TF1 = 232
vKOB, vVOB = 190, 191
QA = 234
VBP = 108 + 4

class VM:
    def __init__(self, A): self.A = A; self.n = 0; self.done = 0
    def op(self, s):
        self.A(s); self.n += 1
        return self.n
    def wait(self, idx):
        if idx <= self.done: return
        k = self.n - idx
        assert 0 <= k < 64
        self.A("s_waitcnt vmcnt(%d)" % k)
        self.done = idx
    def clone(self):
        c = VM(self.A); c.n = self.n; c.done = self.done
        return c

class Gen:
    def __init__(self, stamps=False, smap=None, cal=None, tab="calc", PRE=22, P0=18, rot=0, xe=1, x63=1, rd0=7, wide=False, ldsz=None, limit=400, sleep=1,
                 thresh=24, force=None, raw_flags="", st_flags="sc0 sc1", ld_flags="sc1", out_flags="sc0 sc1", pref=True,
                 b2=30, b3=80, vbpos="k2", L1=4, L2=0, ppos='m0', pat=0, onew=False, lal=3, lpad=0, prio=None, kst=None, vst=None, ebar=False, ksplit=False, qlate=False, vbpre=0, vbat="q3", vfirst=3, pubpos="pre", up3=True, pub2late=False, kunder=False):
        self.__dict__.update(locals()); del self.__dict__["self"]
        self.A = Asm(); self.full = tab == "full"; self.NST = 9
        self.smap = smap or ["start", "a1st", "a2st", "a1pub", "m0", "chk", "k0", "loopend", "end"]

    def stamp(self, name, wait=False):
        if self.stamps and name in self.smap:
            i = self.smap.index(name)
            self.A("s_memrealtime s[%d:%d]" % (64 + 4 * i, 65 + 4 * i))
            self.A("s_memtime s[%d:%d]" % (66 + 4 * i, 67 + 4 * i))
            if wait: self.A("s_waitcnt lgkmcnt(0)")

    def kfrag(self, tile, f): return A_RING + (tile % 2) * 64 + f * 4
    def vfrag(self, tile, e): return A_RING + (tile % 2) * 64 + 32 + e * 4
    def load_instr(self, g):
        tile, f = divmod(g, 16)
        voff = [V_KO0, V_KO1, V_VO0, V_VO1][f // 4]
        return "buffer_load_dwordx4 %s, v%d, s[%d:%d], s%d offen offset:%d %s" % (ar(self.kfrag(tile, f), 4), voff, S_SRD, S_SRD + 3, S_SOFF, (f % 4) * 1024, self.ld_flags)
    def emit_load(self, g, vm=None):
        if g % 16 == 0 and g:
            if self.rot:
                self.A("s_add_u32 s%d, s%d, 0x4000" % (S_J, S_J))
                self.A("s_xor_b32 s%d, s%d, s%d" % (S_SOFF, S_J, S_ROT))
            else: self.A("s_add_u32 s%d, s%d, 0x4000" % (S_SOFF, S_SOFF))
        if vm: return vm.op(self.load_instr(g))
        self.A(self.load_instr(g))
    def mfma(self, d, a, b, c): return "v_mfma_f32_16x16x32_bf16 %s, %s, %s, %s" % (d, a, b, c)
    def qk_list(self, n):
        tile, qb = divmod(n, 4)
        out = []
        for u in range(2):
            d = vr(V_S + (n & 1) * 8 + u * 4, 4)
            for ks in range(4):
                out.append(self.mfma(d, ar(self.kfrag(tile, u * 4 + ks), 4), ar(A_Q + (qb * 4 + ks) * 4, 4), d if ks else vr(V_NEGM + qb * 4, 4)))
        return out
    def pv_list(self, n):
        tile, qb = divmod(n, 4)
        p = vr(V_P + (n & 1) * 4, 4)
        out = []
        for e in range(8):
            d = vr(V_O + (qb * 8 + e) * 4, 4)
            out.append(self.mfma(d, p, ar(self.vfrag(tile, e), 4), d if tile else "0"))
        d = vr(V_L + qb * 4, 4)
        out.append(self.mfma(d, p, ar(A_ONE, 4), d if tile else "0"))
        return out
    def gen_slot(self, n, extra=None, last=None):
        A = self.A
        qk = self.qk_list(n + 1) if n + 1 < 64 else []
        pv = self.pv_list(n - 1) if n - 1 >= 0 else []
        sm = 0 <= n < 64
        mf = [(x, ("K", n + 1, i)) for i, x in enumerate(qk)] + [(x, ("V", n - 1, i)) for i, x in enumerate(pv)]
        issued = [self.PRE + 4 * min(n, 61)]
        def need(tag):
            kind, un, i = tag
            tile, qb = divmod(un, 4)
            if qb != 0 or i not in ((0,) if self.onew else (0, 4)): return
            g = 16 * tile + (8 if kind == "V" else 0) + i + (7 if self.onew else 3)
            k = issued[0] - (g + 1)
            assert 0 <= k < 64, (n, g, k)
            A("s_waitcnt vmcnt(%d)" % k)
        fill = []
        for k in range(4):
            if self.pat == 0 or len(mf) != 17: fill += [("exp", 2 * k), ("exp", 2 * k + 1), ("load", k), ("cvt", k)]
            elif self.pat == 1: fill += [("exp", 2 * k), ("exp", 2 * k + 1), ("cvt", k), ("load", k)]
            elif self.pat == 2: fill += [("exp", 2 * k), ("exp", 2 * k + 1), ("both", k), ("none", k)]
        def emit_fill(f):
            if f[0] == "exp":
                if sm: A("v_exp_f32 v%d, v%d" % ((V_S + (n & 1) * 8 + f[1],) * 2))
            elif f[0] == "cvt":
                r = V_S + (n & 1) * 8 + 2 * f[1]
                if sm: A("v_cvt_pk_bf16_f32 v%d, v%d, v%d" % (V_P + (n & 1) * 4 + f[1], r, r + 1))
            elif f[0] == "none": pass
            elif f[0] == "both":
                emit_fill(("cvt", f[1])); emit_fill(("load", f[1]))
            elif n <= 60:
                self.emit_load(issued[0]); issued[0] += 1
        per = 1 if len(mf) == 17 else 2
        fi = 0
        for g, (m, tag) in enumerate(mf):
            need(tag)
            if last and g == len(mf) - 1:
                for x in last: A(x)
            A(m)
            if extra: extra(n, g)
            for _ in range(per):
                if fi < 16:
                    emit_fill(fill[fi]); fi += 1
        assert fi == 16
    def finishmax(self):
        A = self.A
        for swap in ("v_permlane16_swap_b32", "v_permlane32_swap_b32"):
            for b in range(4): A("v_mov_b32 v%d, v%d" % (V_TM + 4 + b, V_TM + b))
            A("s_nop 1")
            for b in range(4): A("%s v%d, v%d" % (swap, V_TM + b, V_TM + 4 + b))
            A("s_nop 1")
            for b in range(4): A("v_max_f32 v%d, v%d, v%d" % (V_TM + b, V_TM + b, V_TM + 4 + b))
        for b in range(4):
            for k in range(4): A("v_xor_b32 v%d, 0x80000000, v%d" % (V_NEGM + 4 * b + k, V_TM + b))
    def epi_addrs(self):
        A = self.A
        A("s_lshl_b32 s58, s3, 14")
        A("v_add_u32 v%d, s58, v%d" % (V_XB, V_L16))
        for b in range(3): A("v_xor_b32 v%d, 0x%x, v%d" % (V_XA + b, (b + 1) << 14, V_XB))
        A("v_lshlrev_b32 v%d, 10, v%d" % (V_OFF, V_G))
        A("v_lshl_add_u32 v%d, v%d, %d, v%d" % (V_OFF, V_RHO, 4 if self.wide else 3, V_OFF))

    def kv_in_addrs(self, sT, sWV, sWK):
        A = self.A
        c, r = V_RHO, V_G
        A("s_lshl_b32 s56, s%d, 6" % sT)
        A("s_lshl_b32 s57, s%d, 3" % sWK)
        A("s_add_u32 s%d, s56, s57" % S_P0K)
        A("s_lshl_b32 s57, s%d, 3" % sWV)
        A("s_add_u32 s56, s56, s57")
        A("s_lshl_b32 s57, s%d, 11" % S_H)
        A("s_add_u32 s56, s56, s57")
        A("s_add_u32 s57, s57, s%d" % S_P0K)
        A("s_lshl_b32 s58, s56, 9")
        A("v_lshl_add_u32 v%d, v%d, 3, s58" % (vVA, V_LANE))
        A("v_add_u32 v%d, 16384, v%d" % (vVB, vVA))
        A("v_lshlrev_b32 v0, 8, v%d" % r)
        A("v_lshl_add_u32 v0, v%d, 3, v0" % c)
        A("s_lshl_b32 s58, s57, 8")
        A("v_add_u32 v%d, s58, v0" % vQA)
        A("v_add_u32 v%d, 8192, v%d" % (vQB, vQA))
        A("v_lshlrev_b32 v%d, 1, v%d" % (vKA, vQA))
        A("v_lshlrev_b32 v%d, 1, v%d" % (vKB, vQB))
        if self.tab != "calc":
            A("s_lshl_b32 s58, s%d, 8" % S_P0K)
            A("v_add_u32 v%d, s58, v0" % vTA)
            A("v_add_u32 v%d, 8192, v%d" % (vTB, vTA))
        A("s_lshl_b32 s58, s56, 3")
        A("v_lshrrev_b32 v0, 3, v%d" % c)
        A("v_lshl_add_u32 v%d, v0, 8, s58" % vVS)
        A("v_and_b32 v1, 7, v%d" % c)
        A("v_lshl_add_u32 v%d, v1, 3, v%d" % (vVS, vVS))
        A("v_lshl_add_u32 v%d, v%d, 1, v%d" % (vVS, r, vVS))
        A("s_lshl_b32 s58, s57, 3")
        A("v_lshl_add_u32 v%d, v0, 1, s58" % vKS)
        A("v_lshl_add_u32 v%d, v%d, 3, v%d" % (vKS, r, vKS))
        A("v_bfe_u32 v1, v%d, 2, 1" % c)
        A("v_lshl_add_u32 v%d, v1, 8, v%d" % (vKS, vKS))
        A("v_bfe_u32 v1, v%d, 1, 1" % c)
        A("v_lshl_add_u32 v%d, v1, 5, v%d" % (vKS, vKS))
        A("v_and_b32 v1, 1, v%d" % c)
        A("v_lshl_add_u32 v%d, v1, 2, v%d" % (vKS, vKS))
        for k in (VSR, VSR + 1, KSR, KSR + 1): A("v_mov_b32 v%d, 0" % k)
    def kv_out_addrs(self, X, sT, sWV, sWK):
        A = self.A
        c, r = V_RHO, V_G
        dK, dV = ((vKO, vVO), (vKOB, vVOB))[X]
        A("s_lshr_b32 s56, s%d, 3" % sT)
        A("s_lshl_b32 s56, s56, 18")
        A("s_lshl_b32 s57, s%d, 20" % S_H)
        A("s_add_u32 s56, s56, s57")
        if X == 0:
            A("s_bfe_u32 s57, s%d, 0x20001" % sT)
            A("s_lshl_b32 s57, s57, 14")
            A("s_add_u32 s56, s56, s57")
            A("s_and_b32 s57, s%d, 1" % sT)
            A("s_lshl_b32 s57, s57, 9")
            A("s_add_u32 s56, s56, s57")
            A("s_and_b32 s57, s%d, 1" % sWV)
            A("s_lshl_b32 s57, s57, 8")
            A("s_add_u32 s56, s56, s57")
            A("s_lshr_b32 s57, s%d, 1" % sWK)
            A("s_lshl_b32 s57, s57, 16")
            A("s_lshr_b32 s58, s%d, 1" % sWV)
            A("s_lshl_b32 s58, s58, 16")
        else:
            A("s_and_b32 s57, s%d, 7" % sT)
            A("s_lshl_b32 s57, s57, 14")
            A("s_add_u32 s56, s56, s57")
            A("s_add_u32 s56, s56, 0x20000")
            A("s_lshl_b32 s57, s%d, 8" % sWK)
            A("s_lshl_b32 s58, s%d, 8" % sWV)
        A("s_add_u32 s57, s57, s56")
        A("s_add_u32 s57, s57, 4096")
        A("s_add_u32 s58, s58, s56")
        A("s_add_u32 s58, s58, 8192")
        A("v_lshrrev_b32 v0, 2, v%d" % c)
        A("v_lshl_add_u32 v%d, v0, 10, s57" % dK)
        A("v_and_b32 v0, 3, v%d" % c)
        A("v_lshl_add_u32 v%d, v0, 6, v%d" % (dK, dK))
        A("v_lshl_add_u32 v%d, v%d, 4, v%d" % (dK, r, dK))
        if self.wide:
            A("v_lshl_add_u32 v%d, v0, 11, s58" % dV)
            A("v_lshrrev_b32 v0, 2, v%d" % V_LANE)
            A("v_lshl_add_u32 v%d, v0, 4, v%d" % (dV, dV))
            return
        A("v_lshrrev_b32 v0, 5, v%d" % V_LANE)
        A("v_lshl_add_u32 v%d, v0, 12, s58" % dV)
        A("v_and_b32 v0, 1, v%d" % V_LANE)
        A("v_lshl_add_u32 v%d, v0, 11, v%d" % (dV, dV))
        A("v_bfe_u32 v0, v%d, 1, 4" % V_LANE)
        A("v_lshl_add_u32 v%d, v0, 4, v%d" % (dV, dV))
    def ld_scales(self):
        return ["global_load_short_d16_hi v%d, v%d, %s" % (VSR, vVS, sp(S_VSC)),
                "global_load_short_d16_hi v%d, v%d, %s" % (VSR + 1, vVS, sp(S_VZ)),
                "global_load_short_d16_hi v%d, v%d, %s" % (KSR, vKS, sp(S_KSC)),
                "global_load_short_d16_hi v%d, v%d, %s" % (KSR + 1, vKS, sp(S_KZ))]
    def ld_v(self, X):
        return ["global_load_dwordx2 %s, v%d, %s offset:%d %s" % (vr((VRA, VRB)[X] + 2 * j, 2), (vVA, vVB)[X], sp(S_QV), j * 512, self.raw_flags) for j in range(8)]
    def ld_tab(self, it, dst, scos, ssin):
        X, u = divmod(it, 2)
        vt = (vTA, vTB)[X]
        L = ["global_load_dwordx2 %s, v%d, %s offset:%d" % (vr(dst, 2), vt, sp(scos), u * 1024),
             "global_load_dwordx2 %s, v%d, %s offset:%d" % (vr(dst + 2, 2), vt, sp(ssin), u * 1024)]
        if self.full:
            L += ["global_load_dwordx2 %s, v%d, %s offset:%d" % (vr(dst + 4, 2), vt, sp(scos), u * 1024 + 128),
                  "global_load_dwordx2 %s, v%d, %s offset:%d" % (vr(dst + 6, 2), vt, sp(ssin), u * 1024 + 128)]
        return L
    def ld_k(self, it, alone=False):
        X, u = divmod(it, 2)
        va = (vKA, vKB)[X]
        own = self.tab in ("full", "half") or (self.tab == "shared" and (alone or it < 2))
        L = self.ld_tab(it, KTAB + 8 * it, S_KCOS, S_KSIN) if own else []
        return L + ["global_load_dwordx4 %s, v%d, %s offset:%d %s" % (vr(KRAW + 8 * it, 4), va, sp(S_QK), u * 2048, self.raw_flags),
                    "global_load_dwordx4 %s, v%d, %s offset:%d %s" % (vr(KRAW + 8 * it + 4, 4), va, sp(S_QK), u * 2048 + 256, self.raw_flags)]
    def ld_q(self, it):
        X, u = divmod(it, 2)
        vq = (vQA, vQB)[X]
        L = self.ld_tab(it, QTAB + 8 * it, S_QCOS, S_QSIN) if self.tab in ("full", "half") else []
        if self.tab == "shared" and it >= 2: L = self.ld_tab(it, KTAB + 8 * it, S_KCOS, S_KSIN)
        return L + ["global_load_dwordx2 %s, v%d, %s offset:%d %s" % (vr(QRAW + 4 * it, 2), vq, sp(S_Q), u * 1024, self.raw_flags),
                    "global_load_dwordx2 %s, v%d, %s offset:%d %s" % (vr(QRAW + 4 * it + 2, 2), vq, sp(S_Q), u * 1024 + 128, self.raw_flags)]
    def tf(self, it):
        if self.tab in ("shared", "calc"):
            b = QTAB + 8 * it
            return (b, b + 4, b, b + 4)
        if self.full: return (TF1, TF1 + 4, V_TM, V_TM + 4)
        return (TF1, TF1 + 4, TF1, TF1 + 4)
    def unpack(self, dst, src):
        for w in range(2):
            self.A("v_lshlrev_b32 v%d, 16, v%d" % (dst + 2 * w, src + w))
            self.A("v_and_b32 v%d, 0xffff0000, v%d" % (dst + 2 * w + 1, src + w))
    def calc_tabs(self, items):
        A = self.A
        if 0 in items:
            A("v_lshlrev_b32 v0, 2, v%d" % V_RHO)
            A("v_cvt_f32_u32 v0, v0")
            A("s_mov_b32 s59, 0x%x" % f2u(-math.log2(10000.0) / 64))
            for x in range(4):
                if x: A("v_add_f32 v1, %s, v0" % ("1.0", "2.0", "0x40400000")[x - 1])
                A("v_mul_f32 v%d, s59, v%d" % (INV + x, 1 if x else 0))
            for x in range(4): A("v_exp_f32 v%d, v%d" % (INV + x, INV + x))
        A("v_add_u32 v0, s%d, v%d" % (S_P0K, V_G))
        for it in items:
            X, u = divmod(it, 2)
            A("v_add_u32 v1, %d, v0" % (32 * X + 4 * u))
            A("v_cvt_f32_u32 v1, v1")
            b = QTAB + 8 * it
            for x in range(4): A("v_mul_f32 v%d, v1, v%d" % (b + x, INV + x))
            for x in range(4): A("v_mul_f32 v%d, 0.15915494, v%d" % (b + x, b + x))
            for x in range(4): A("v_fract_f32 v%d, v%d" % (b + x, b + x))
            for x in range(4): A("v_sin_f32 v%d, v%d" % (b + 4 + x, b + x))
            for x in range(4): A("v_cos_f32 v%d, v%d" % (b + x, b + x))
            for p in (2, 3, 0, 1): A("v_cvt_pk_bf16_f32 v%d, v%d, v%d" % (TMP + 4 + p, b + 2 * p, b + 2 * p + 1))
            self.unpack(b, TMP + 4); self.unpack(b + 4, TMP + 6)
    def rope(self, it, src, dst, scale=False):
        A = self.A
        cl, sl, ch, sh = self.tf(it)
        for p in range(2):
            A("v_pk_mul_f32 %s, %s, %s" % (vr(TMP + 2 * p, 2), vr(src + 2 * p, 2), vr(cl + 2 * p, 2)))
            A("v_pk_mul_f32 %s, %s, %s" % (vr(TMP + 4 + 2 * p, 2), vr(src + 4 + 2 * p, 2), vr(ch + 2 * p, 2)))
        for p in range(2):
            A("v_pk_fma_f32 %s, %s, %s, %s neg_lo:[1,0,0] neg_hi:[1,0,0]" % (vr(TMP + 2 * p, 2), vr(src + 4 + 2 * p, 2), vr(sl + 2 * p, 2), vr(TMP + 2 * p, 2)))
            A("v_pk_fma_f32 %s, %s, %s, %s" % (vr(TMP + 4 + 2 * p, 2), vr(src + 2 * p, 2), vr(sh + 2 * p, 2), vr(TMP + 4 + 2 * p, 2)))
        if scale:
            for p in range(4): A("v_pk_mul_f32 %s, %s, %s" % (vr(TMP + 2 * p, 2), vr(TMP + 2 * p, 2), sp(S_CS)))
        for x in range(4): A("v_cvt_pk_bf16_f32 v%d, v%d, v%d" % (dst + x, TMP + 2 * x, TMP + 2 * x + 1))
    def do_scales(self):
        A = self.A
        A("v_mul_f32 v%d, 0x%x, v%d" % (KSR, f2u(CSCALE), KSR))
        A("v_mul_f32 v%d, v%d, v%d" % (KSR + 1, KSR + 1, KSR))
        for j in range(8):
            A("ds_swizzle_b32 v%d, v%d offset:swizzle(BROADCAST,8,%d)" % (KP + 2 * j, KSR, j))
            A("ds_swizzle_b32 v%d, v%d offset:swizzle(BROADCAST,8,%d)" % (KP + 2 * j + 1, KSR + 1, j))
    def do_vpair(self, X, p):
        A = self.A
        raw, out = ((VRA, VOA), (VRB, VOB))[X]
        a = raw + 4 * p
        k = 8 * X + 2 * p
        for x in range(4): A("v_cvt_f32_i32 v%d, v%d" % (a + x, a + x))
        for x in range(4): A("v_subrev_f32_dpp v%d, v%d, v%d row_newbcast:%d row_mask:0xf bank_mask:0xf" % (a + x, VSR + 1, a + x, k + x // 2))
        for x in range(4): A("v_mul_f32_dpp v%d, v%d, v%d row_newbcast:%d row_mask:0xf bank_mask:0xf" % (a + x, VSR, a + x, k + x // 2))
        for x in range(2): A("v_cvt_pk_bf16_f32 v%d, v%d, v%d" % (out + 4 * x + p, a + x, a + 2 + x))
    def st_v(self, X):
        return ["global_store_dwordx4 v%d, %s, %s offset:%d %s" % ((vVO, vVOB)[X], vr((VOA, VOB)[X] + 4 * x, 4), sp(S_WS), x * 1024, self.st_flags) for x in range(2)]
    def do_tab(self, it, raw):
        t = self.tf(it)
        for k in range(4 if self.full else 2): self.unpack(t[k], raw + 8 * it + 2 * k)
    def kout(self, it): return KRAW + 8 * it if it < 2 else KBO + 4 * (it - 2)
    def do_k(self, it):
        A = self.A
        cc = KRAW + 8 * it
        for x in range(8): A("v_cvt_f32_i32 v%d, v%d" % (cc + x, cc + x))
        for q in range(4):
            d, p = cc + 2 * q, KP + 4 * it + 2 * (q // 2)
            A("v_pk_fma_f32 %s, %s, %s, %s op_sel:[0,0,1] op_sel_hi:[1,0,1] neg_lo:[0,0,1] neg_hi:[0,0,1]" % (vr(d, 2), vr(d, 2), vr(p, 2), vr(p, 2)))
        self.rope(it, cc, self.kout(it))
    def st_k(self, it):
        X, u = divmod(it, 2)
        return "global_store_dwordx4 v%d, %s, %s offset:%d %s" % ((vKO, vKOB)[X], vr(self.kout(it), 4), sp(S_WS), (u - 1) * 4096, self.st_flags)
    def do_q(self, it):
        X, u = divmod(it, 2)
        b = QRAW + 4 * it
        self.unpack(QF, b); self.unpack(QF + 4, b + 2)
        o = QOUT + 4 * (it & 1)
        self.rope(it, QF, o)
        self.A("ds_write_b128 v%d, %s offset:%d" % (vQL, vr(o, 4), X * 8192 + u * 64))

    def poll_instr(self): return "global_load_dwordx2 %s, v%d, %s sc1" % (vr(V_PD, 2), V_POLL, sp(S_DBG))
    def check_flags(self, level, ok=None, bad=None):
        A = self.A
        A("v_readfirstlane_b32 s58, v%d" % V_PD)
        A("v_readfirstlane_b32 s59, v%d" % (V_PD + 1))
        A("s_nop 2")
        A("s_xor_b32 s58, s58, s%d" % S_EX)
        A("s_xor_b32 s59, s59, s%d" % S_EX)
        A("s_or_b32 s58, s58, s59")
        if level < 2: A("s_and_b32 s58, s58, 0x%x" % ((0x9f9f9f9f, 0xbfbfbfbf)[level]))
        if bad: A("s_cbranch_scc1 %s" % bad)
        else: A("s_cbranch_scc0 %s" % ok)
    def slow_poll(self, name, level, ok, bad):
        A = self.A
        A.label(name)
        if self.sleep: A("s_sleep %d" % self.sleep)
        A(self.poll_instr())
        A("s_add_u32 s%d, s%d, 1" % (S_NPOLL, S_NPOLL))
        A("s_waitcnt vmcnt(0)")
        self.check_flags(level, ok=ok)
        A("s_cmp_lt_u32 s%d, %d" % (S_NPOLL, self.limit))
        A("s_cbranch_scc1 %s" % name)
        A("s_branch %s" % bad)
    def publish(self, level, name):
        A = self.A
        A("s_mov_b64 exec, 1")
        A("ds_add_rtn_u32 v%d, v%d, v%d offset:%d" % (V_FV, V_CA, V_ONE, 4 * level))
        A("s_and_b32 s59, s%d, 0x%x" % (S_EX, (0x1f, 0x3f, 0x7f)[level]))
        A("s_waitcnt lgkmcnt(0)")
        A("v_readfirstlane_b32 s58, v%d" % V_FV)
        A("v_mov_b32 v%d, s59" % V_FV)
        A("s_nop 2")
        A("s_cmp_eq_u32 s58, 3")
        A("s_cbranch_scc0 %s" % name)
        A("global_store_byte v%d, v%d, %s" % (V_FA, V_FV, sp(S_DBG)))
        A.label(name)
        A("s_mov_b64 exec, -1")

    def gen(self):
        A = self.A
        PRE = self.PRE
        A.raw(HEADER.rstrip("\n"))
        A.raw("; @launch grid=(256,1,1) block=(256,1,1) lds=%d" % (self.ldsz or LDS_TOTAL))
        A.raw(DOC.rstrip("\n"))
        A.raw('.amdgcn_target "amdgcn-amd-amdhsa--gfx950"')
        A.raw(".text")
        A.raw(".globl %s" % MAINK)
        A.raw(".p2align 8")
        A.raw(".type %s,@function" % MAINK)
        A.label(MAINK)
        A("s_cmp_ge_u32 s2, 256")
        A("s_cbranch_scc1 M_end")
        A("s_load_dwordx16 s[8:23], s[0:1], 0")
        if not self.ksplit:
            A("s_load_dwordx8 s[24:31], s[0:1], 64")
            A("s_load_dwordx4 s[32:35], s[0:1], 96")
        self.stamp("start")
        vm = VM(A)
        if self.pref:
            A.c("pull this kernel's own code towards L2 before the data stream saturates the fabric")
            A("s_getpc_b64 s[56:57]")
            A("v_lshlrev_b32 v1, 6, v0")
            A("v_min_u32 v1, M_codeend-%s-64, v1" % MAINK)
            vm.op("global_load_dword v%d, v1, s[56:57]" % V_DUM)
        A("v_lshrrev_b32 v1, 6, v0")
        A("v_and_b32 v%d, 63, v0" % V_LANE)
        A("v_readfirstlane_b32 s3, v1")
        A("v_and_b32 v%d, 15, v%d" % (V_RHO, V_LANE))
        A("v_lshrrev_b32 v%d, 4, v%d" % (V_G, V_LANE))
        A("s_and_b32 s%d, s2, 7" % S_H)
        A("s_lshr_b32 s%d, s2, 3" % S_T)
        A("s_xor_b32 s%d, s3, 2" % S_WK)
        A.c("input offsets; waves 0,1 convert V rows first, waves 2,3 K rows first")
        self.kv_in_addrs(S_T, 3, S_WK)
        A("s_waitcnt lgkmcnt(0)")
        for x in self.ld_scales(): i_sc = vm.op(x)
        lv, lk = self.ld_v(0), self.ld_k(0) + self.ld_k(1)
        nk = len(self.ld_k(0))
        base = vm.n
        def burst(name, first, second):
            L = ["s_cmp_lt_u32 s3, 2", "s_cbranch_scc0 %s_b" % name] + first + ["s_branch %s_e" % name, "%s_b:" % name] + second + ["%s_e:" % name]
            return L
        def emit(L):
            for x in L:
                if x.endswith(":"): A.label(x[:-1])
                else: A(x)
        emit(burst("M_ld1", lv, lk))
        if self.ksplit:
            assert self.ebar and self.tab == "calc"
            A("s_load_dwordx8 s[24:31], s[0:1], 64")
            A("s_load_dwordx4 s[32:35], s[0:1], 96")
        vm.n += len(lv) + len(lk)
        iV = [{("v", j): base + 1 + j for j in range(8)}, {("v", j): base + len(lk) + 1 + j for j in range(8)}]
        for j in range(len(lk)):
            iV[0][("k", j)] = base + 8 + 1 + j
            iV[1][("k", j)] = base + 1 + j
        idx = {}
        def ldg(g): return self.ld_q(int(g[1])) if g[0] == "q" else self.ld_k(int(g[1]))
        seq = ["q0", "q1", "q2", "q3", "k2", "k3"]
        G1, G2, G3 = seq[:self.L1], seq[self.L1:self.L1 + self.L2], seq[self.L1 + self.L2:]
        q01 = []
        for g in G1:
            for j, x in enumerate(ldg(g)):
                q01.append(x); vm.n += 1; idx[(g, j)] = vm.n
        mark = len(A.L)
        A("v_mov_b32 v%d, %d" % (V_CA, LDS_CNT))
        A("v_mov_b32 v%d, 1" % V_ONE)
        for k in range(4): A("v_mov_b32 v%d, 0" % (TMP + k))
        A("ds_write_b128 v%d, %s" % (V_CA, vr(TMP, 4)))
        if self.prio == "rank": A("ds_write_b32 v%d, v%d offset:16" % (V_CA, TMP))
        if self.tab == "calc": self.calc_tabs([0, 1])
        self.kv_out_addrs(0, S_T, 3, S_WK)
        A("s_lshl_b32 s58, s3, 6")
        A("s_add_u32 s58, s58, %d" % LDS_K)
        A("v_lshl_add_u32 v%d, v%d, 8, s58" % (vKL, V_RHO))
        A("v_lshl_add_u32 v%d, v%d, 4, v%d" % (vKL, V_G, vKL))
        def qaddrs():
            A("s_lshl_b32 s59, s3, 12")
            A("s_add_u32 s59, s59, %d" % LDS_Q)
            A("v_add_u32 v%d, s59, v%d" % (QA + 3, V_L16))
            for b in range(3): A("v_xor_b32 v%d, 0x%x, v%d" % (QA + b, (b + 1) << 12, QA + 3))
            A("v_and_b32 v%d, 0x330, v%d" % (QA + 4, V_L16))
            A("v_add_u32 v%d, %d, v%d" % (QA + 4, LDS_K, QA + 4))
        def setup2():
            if self.tab == "calc": self.calc_tabs([2, 3])
            A("s_lshr_b32 s58, s%d, 1" % S_WK)
            A("s_lshl_b32 s58, s58, 12")
            A("s_and_b32 s59, s3, 1")
            A("s_lshl_b32 s59, s59, 7")
            A("s_add_u32 s58, s58, s59")
            A("s_add_u32 s58, s58, %d" % LDS_Q)
            A("v_lshl_add_u32 v%d, v%d, 8, s58" % (vQL, V_RHO))
            A("v_lshl_add_u32 v%d, v%d, 4, v%d" % (vQL, V_G, vQL))
            A("s_getreg_b32 s58, hwreg(HW_REG_XCC_ID, 0, 4)")
            if self.force == "remote": A("s_and_b32 s58, s%d, 1" % S_T)
            A("s_mul_i32 s58, s58, 0x01010101")
            A("s_or_b32 s%d, s58, 0x70707070" % S_EX)
            A("s_lshl_b32 s58, s%d, 5" % S_H)
            A("s_lshl_b32 s59, s3, 3")
            A("s_add_u32 s59, s59, s58")
            A("v_mov_b32 v%d, s59" % V_POLL)
            A("s_add_u32 s58, s58, s%d" % S_T)
            A("v_mov_b32 v%d, s58" % V_FA)
        def setup3():
            A("s_lshl_b32 s58, s%d, 5" % S_H)
            A("s_add_u32 s58, s58, s%d" % S_T)
            A("s_lshl_b32 s58, s58, 14")
            A("s_lshl_b32 s59, s3, 12")
            A("s_add_u32 s58, s58, s59")
            A("s_add_u32 s%d, s%d, s58" % (S_OSRD, S_OUT))
            A("s_addc_u32 s%d, s%d, 0" % (S_OSRD + 1, S_OUT + 1))
            A("s_mov_b32 s%d, 0x1000" % (S_OSRD + 2))
            A("s_mov_b32 s%d, 0x20000" % (S_OSRD + 3))
            A("v_lshrrev_b32 v0, 2, v%d" % V_RHO)
            A("v_lshlrev_b32 v0, 8, v0")
            A("v_lshl_add_u32 v0, v%d, 6, v0" % V_G)
            A("v_and_b32 v1, 3, v%d" % V_RHO)
            A("v_lshl_add_u32 v%d, v1, 4, v0" % V_KO0)
            A("v_add_u32 v%d, 4096, v%d" % (V_KO1, V_KO0))
            A("v_lshlrev_b32 v%d, 4, v%d" % (V_L16, V_LANE))
            A("v_mov_b32 v0, 0x3f803f80")
            A("v_add_u32 v%d, 8192, v%d" % (V_VO0, V_L16))
            A("v_add_u32 v%d, 12288, v%d" % (V_VO1, V_L16))
            for k in range(4): A("v_accvgpr_write_b32 a%d, v0" % (A_ONE + k))
            A("v_lshrrev_b32 v0, 2, v%d" % V_RHO)
            A("v_cmp_eq_u32 vcc, v0, v%d" % V_G)
            A("v_lshlrev_b32 v1, 4, v1")
            A("v_mov_b32 v0, 0x3f80")
            A("v_cndmask_b32 v%d, 0, v0, vcc" % TMP)
            A("v_mov_b32 v%d, 0" % (TMP + 1))
            A("v_lshlrev_b64 %s, v1, %s" % (vr(TMP, 2), vr(TMP, 2)))
            for k in (0, 1, 4, 5): A("v_accvgpr_write_b32 a%d, 0" % (A_SEL + k))
            for k in range(2): A("v_accvgpr_write_b32 a%d, v%d" % (A_SEL + 2 + k, TMP + k))
            A("s_lshl_b32 s58, s%d, 20" % S_H)
            A("s_lshl_b32 s59, s3, 18")
            A("s_add_u32 s58, s58, s59")
            A("s_add_u32 s%d, s%d, s58" % (S_SRD, S_WS))
            A("s_addc_u32 s%d, s%d, 0" % (S_SRD + 1, S_WS + 1))
            A("s_mov_b32 s%d, 0x40000" % (S_SRD + 2))
            A("s_mov_b32 s%d, 0x20000" % (S_SRD + 3))
            for s_ in (S_RETRY, S_NPOLL, S_STAGE, S_VBD, S_J): A("s_mov_b32 s%d, 0" % s_)
            A("s_and_b32 s%d, s%d, %d" % (S_ROT, S_T, self.rot))
            A("s_lshl_b32 s%d, s%d, 14" % (S_ROT, S_ROT))
            A("s_mov_b32 s%d, s%d" % (S_SOFF, S_ROT))
            if self.tab in ("calc", "shared"): qaddrs()
            self.epi_addrs()
        if self.up3: setup3()
        body = A.L[mark:]; del A.L[mark:]
        def safe(i):
            while i < len(body) and ("s_addc" in body[i] or "s_cbranch" in body[i] or "s_cselect" in body[i]): i += 1
            return min(i, len(body))
        p2 = safe(self.b2); p3 = safe(max(self.b3, p2))
        A.L += body[:p2]
        if self.ebar:
            A("s_waitcnt lgkmcnt(0)")
            A("s_barrier")
        emit(burst("M_ld2", lk, lv))
        A.L += body[p2:p3]
        if not self.qlate:
            for x in q01: A(x)
        A.L += body[p3:]
        if not self.ebar:
            A("s_waitcnt lgkmcnt(0)")
            A("s_barrier")
        if self.qlate:
            A("s_waitcnt vmcnt(%d)" % (len(lv) + len(lk))); vm.done = i_sc
            self.do_scales()
            for x in q01: A(x)
        else:
            vm.wait(i_sc)
            self.do_scales()
        def vpart(v, I):
            for p in range(4):
                v.wait(I[("v", 2 * p + 1)])
                self.do_vpair(0, p)
            for x in self.st_v(0): v.op(x)
        def kpart(v, I):
            for it in range(2):
                if nk > 2:
                    v.wait(I[("k", it * nk + nk - 3)])
                    self.do_tab(it, KTAB)
                v.wait(I[("k", it * nk + nk - 1)])
                if it == 0: A("s_waitcnt lgkmcnt(0)")
                self.do_k(it)
                v.op(self.st_k(it))
                if it == 0: A("ds_write_b128 v%d, %s" % (vKL, vr(self.kout(0), 4)))
        def half(h):
            A("s_cmp_lt_u32 s3, 2")
            A("s_cbranch_scc0 M_h%db" % h)
            v0_ = vm.clone(); (vpart, kpart)[h](v0_, iV[0])
            A("s_branch M_h%de" % h)
            A.label("M_h%db" % h)
            v1_ = vm.clone(); (kpart, vpart)[h](v1_, iV[1])
            A.label("M_h%de" % h)
            assert v0_.n == v1_.n
            vm.n = v0_.n; vm.done = min(v0_.done, v1_.done)
            return vm.n
        A.c("rows 0..15 of this workgroup -> tiles 0..3 of the quarter")
        lastA1 = half(0)
        self.stamp("a1st")
        for g in G2:
            for j, x in enumerate(ldg(g)): idx[(g, j)] = vm.op(x)
        setup2()
        A.c("rows 16..31 -> tiles 4..7")
        lastA2 = half(1)
        self.stamp("a2st")
        for g in G3:
            for j, x in enumerate(ldg(g)): idx[(g, j)] = vm.op(x)
        pub = [0]
        def need(k):
            while pub[0] < (1 if self.pub2late else 2) and k > (lastA1, lastA2)[pub[0]]:
                vm.wait((lastA1, lastA2)[pub[0]])
                if self.force != "timeout": self.publish(pub[0], "M_pub%d" % pub[0])
                self.stamp(("a1pub", "a2pub")[pub[0]])
                pub[0] += 1
            vm.wait(k)
        self.kv_out_addrs(1, S_T, 3, S_WK)
        if not self.up3: setup3()
        def pubA1():
            if pub[0] == 0:
                vm.wait(lastA1)
                if self.force != "timeout": self.publish(0, "M_pub0")
                self.stamp("a1pub", wait=True)
                pub[0] = 1
        iP = [None]; iB = []
        lvb = self.ld_v(1)
        def vbissue():
            if iP[0] is None: iP[0] = vm.op(self.poll_instr())
            for x in lvb[len(iB):]: iB.append(vm.op(x))
        def pollat(at):
            if at == self.ppos: iP[0] = vm.op(self.poll_instr())
        def item(g):
            it = int(g[1]); n = len(ldg(g))
            if n > 2:
                need(idx[(g, n - 3)])
                self.do_tab(it, QTAB if (g[0] == "q" and self.tab != "shared") else KTAB)
            need(idx[(g, n - 1)])
            if self.vbat == "spread" and g[0] == "q":
                for x in lvb[len(iB):min(self.vbpre, len(iB) + 2)]: iB.append(vm.op(x))
            if g == self.vbat:
                for x in lvb[:self.vbpre]: iB.append(vm.op(x))
            pollat(g)
            if self.vbpos == g: vbissue()
            (self.do_q if g[0] == "q" else self.do_k)(it)
            if g[0] == "k" and self.kst == "early": vm.op(self.st_k(it))
        if self.vbat == "a2":
            for x in lvb[:self.vbpre]: iB.append(vm.op(x))
        A.c("q rows -> LDS")
        for g in seq[:4]: item(g)
        if self.pubpos == "pre": pubA1()
        KF, SM0 = VRA + 16, VRA
        if self.tab in ("half", "full"): qaddrs()
        A("s_waitcnt lgkmcnt(0)")
        A("s_barrier")
        self.stamp("qbar", wait=True)
        A.c("q fragments -> a[128:191]; first row shifts from four keys of this workgroup")
        rd = []
        for ks in range(4):
            rd.append("ds_read_b128 %s, v%d offset:%d" % (vr(KF + 4 * ks, 4), QA + 4, ks * 1024))
            for b in range(4): rd.append("ds_read_b128 %s, v%d offset:%d" % (ar(A_Q + (b * 4 + ks) * 4, 4), QA + b, ks * 1024))
        for x in rd[:15]: A(x)
        A("s_waitcnt lgkmcnt(10)")
        for x in rd[15:]: A(x)
        if self.pubpos == "rd": pubA1()
        if self.vbpos == "bar": vbissue()
        for ks in range(4):
            if ks: A("s_waitcnt lgkmcnt(%d)" % (15 - 5 * ks))
            for b in range(4):
                d = vr(SM0 + 4 * b, 4)
                A(self.mfma(d, vr(KF + 4 * ks, 4), ar(A_Q + (b * 4 + ks) * 4, 4), d if ks else "0"))
        pubA1()
        pollat("mf")
        if self.vbpos == "mf": vbissue()
        if self.kunder: item("k2")
        else: A("s_nop 7")
        for b in range(4):
            x, d = SM0 + 4 * b, V_NEGM + 4 * b
            A("v_min3_f32 v%d, -v%d, -v%d, -v%d" % (d, x, x + 1, x + 2))
        for b in range(4): A("v_min_f32_e64 v%d, v%d, -v%d" % (V_NEGM + 4 * b, V_NEGM + 4 * b, SM0 + 4 * b + 3))
        for b in range(4):
            for k in range(1, 4): A("v_mov_b32 v%d, v%d" % (V_NEGM + 4 * b + k, V_NEGM + 4 * b))
        self.stamp("m0")
        pollat("m0")
        if self.vbpos == "m0": vbissue()
        A.c("rows 32..63 -> tiles 8..15 (stored once the tile stream is running)")
        if not self.kunder: item("k2")
        item("k3")
        nf = min(self.vfirst, self.vbpre // 2)
        if nf and self.pub2late:
            need(lastA2)
            if self.force != "timeout": self.publish(1, "M_pub1")
        for p in range(nf):
            if self.vbpos == "v%d" % p: vbissue()
            need(iB[2 * p + 1])
            self.do_vpair(1, p)
        vbissue()
        need(iP[0])
        assert vm.done >= lastA2
        self.stamp("chk")
        self.check_flags(0, bad="M_late1")
        gl = {}
        P0 = min(PRE, self.P0)
        for g in range(P0): gl[g] = self.emit_load(g, vm)
        if self.kst == "p0":
            for it in (2, 3): vm.op(self.st_k(it))
        if not nf and self.pub2late and self.force != "timeout": self.publish(1, "M_pub1")
        for p in range(nf, 4):
            vm.wait(iB[2 * p + 1])
            self.do_vpair(1, p)
        A.label("M_k0")
        rest = list(range(P0, PRE))
        bst = ([] if self.kst else [self.st_k(2), self.st_k(3)]) + self.st_v(1)
        if self.vst == "k0":
            for x in bst: vm.op(x)
        if self.prio == "rank":
            A("s_mov_b64 exec, 1")
            A("ds_add_rtn_u32 v%d, v%d, v%d offset:16" % (V_FV, V_CA, V_ONE))
            A("s_mov_b64 exec, -1")
        vm.wait(gl[3])
        if self.prio == "rank":
            A("s_waitcnt lgkmcnt(0)")
            A("v_readfirstlane_b32 s58, v%d" % V_FV)
            A("s_nop 2")
            for w in range(1, 4):
                A("s_cmp_eq_u32 s58, %d" % w)
                A("s_cbranch_scc0 M_rk%d" % w)
                A("s_setprio %d" % w)
                A.label("M_rk%d" % w)
        self.stamp("k0")
        for i, x in enumerate(self.qk_list(0)):
            if i == 4: vm.wait(gl[7])
            A(x)
            if rest:
                g = rest.pop(0); gl[g] = self.emit_load(g, vm)
        while rest:
            g = rest.pop(0); gl[g] = self.emit_load(g, vm)
        A.c("uncounted from here on (only make the loop's waits stricter): flag sample, last 32 rows")
        A(self.poll_instr())
        if self.vst != "k0":
            for x in bst: A(x)
        A("s_nop 2")
        A.c("slot n: K Q^T of unit n+1, exp/pack of unit n, P V of unit n-1 (unit = 32 keys x 16 q rows), four fragment loads")
        A.label("M_go")
        if self.prio == "wave":
            for w in range(1, 4):
                A("s_cmp_eq_u32 s3, %d" % w)
                A("s_cbranch_scc0 M_pr%d" % w)
                A("s_setprio %d" % w)
                A.label("M_pr%d" % w)
        for n in range(0, 5): self.gen_slot(n)
        assert PRE <= 23 and PRE + 4 * 21 <= 128
        A("s_mov_b32 s%d, 7" % S_CNT)
        A("s_cmp_lg_u32 s%d, 0" % S_STAGE)
        A("s_cbranch_scc1 M_loop")
        A("s_mov_b32 s%d, 1" % S_CNT)
        self.publish(2, "M_pub2")
        self.check_flags(1, bad="M_slow1")
        self.stamp("loopstart")
        A.raw(".p2align %d" % self.lal)
        for _ in range(self.lpad): A("s_nop 0")
        A.label("M_loop")
        for n in range(5, 12): self.gen_slot(n)
        self.gen_slot(12, last=["s_sub_u32 s%d, s%d, 1" % (S_CNT, S_CNT), "s_cmp_lg_u32 s%d, 0" % S_CNT])
        A("s_cbranch_scc1 M_loop")
        A("s_cmp_lt_u32 s%d, 2" % S_STAGE)
        A("s_cbranch_scc0 M_tail")
        A("s_add_u32 s%d, s%d, 1" % (S_STAGE, S_STAGE))
        A("s_cmp_eq_u32 s%d, 1" % S_STAGE)
        A("s_cbranch_scc0 M_hook2")
        self.stamp("h1")
        A("s_mov_b32 s%d, 1" % S_CNT)
        A(self.poll_instr())
        A("s_branch M_loop")
        A.label("M_hook2")
        self.stamp("h2")
        A("s_mov_b32 s%d, 5" % S_CNT)
        self.check_flags(2, ok="M_loop")
        A("s_branch M_slow2")
        A.label("M_tail")
        self.stamp("exit")
        self.epilogue()
        self.finish_debug()
        A.label("M_end")
        A("s_endpgm")

        A.label("M_late1")
        if not nf and self.pub2late and self.force != "timeout": self.publish(1, "M_pub1l")
        A("s_waitcnt vmcnt(%d)" % (4 if self.kst == "early" and self.vbpos == "k2" else 2))
        A(self.poll_instr())
        for p in range(nf, 3): self.do_vpair(1, p)
        A("s_add_u32 s%d, s%d, 1" % (S_NPOLL, S_NPOLL))
        A("s_waitcnt vmcnt(0)")
        self.check_flags(0, bad="M_slow0")
        A.label("M_late3")
        for g in range(P0): self.emit_load(g)
        if self.kst == "p0":
            for it in (2, 3): A(self.st_k(it))
        self.do_vpair(1, 3)
        A("s_branch M_k0")
        self.slow_poll("M_slow0", 0, "M_late3", "M_self_a")
        self.slow_poll("M_slow1", 1, "M_loop", "M_self")
        self.slow_poll("M_slow2", 2, "M_loop", "M_self")
        A.label("M_codeend")
        A.label("M_vote")
        A("ds_write_b32 v%d, v%d offset:12" % (V_CA, V_ONE))
        A("s_branch M_voted")
        A.c("hand-off unavailable (producer on another die, or not running yet): this wave dequantises its own KV range")
        A.label("M_self_a")
        self.do_vpair(1, 3)
        for x in [self.st_k(2), self.st_k(3)] + self.st_v(1): A(x)
        A("s_waitcnt vmcnt(0) lgkmcnt(0)")
        self.publish(2, "M_pub2s")
        A.label("M_self")
        A("s_waitcnt vmcnt(0) lgkmcnt(0)")
        A("s_mov_b32 s60, 0")
        A.label("M_selfloop")
        A("s_lshr_b32 s%d, s60, 2" % S_FT)
        A("s_lshl_b32 s56, s3, 3")
        A("s_add_u32 s%d, s%d, s56" % (S_FT, S_FT))
        A("s_and_b32 s%d, s60, 3" % S_FW)
        A("s_xor_b32 s%d, s%d, 2" % (S_FWK, S_FW))
        self.kv_in_addrs(S_FT, S_FW, S_FWK)
        for x in self.ld_scales() + self.ld_v(0) + self.ld_v(1) + sum((self.ld_k(it, True) for it in range(4)), []): A(x)
        if self.tab == "calc": self.calc_tabs([0, 1, 2, 3])
        self.kv_out_addrs(0, S_FT, S_FW, S_FWK)
        A("s_waitcnt vmcnt(0)")
        self.do_scales()
        A("s_waitcnt lgkmcnt(0)")
        self.kv_out_addrs(1, S_FT, S_FW, S_FWK)
        for X in range(2):
            for p in range(4): self.do_vpair(X, p)
            for x in self.st_v(X): A(x)
        for it in range(4):
            if self.tab != "calc": self.do_tab(it, KTAB)
            self.do_k(it)
            A(self.st_k(it))
        A("s_waitcnt vmcnt(0)")
        A("s_add_u32 s60, s60, 1")
        A("s_cmp_lt_u32 s60, 32")
        A("s_cbranch_scc1 M_selfloop")
        A("s_branch M_restart")
        A.c("true row maxima over all keys (each wave scans its range, LDS joins them), then redo the pass")
        A.label("M_fallback")
        A("s_waitcnt vmcnt(0) lgkmcnt(0)")
        A("s_mov_b32 s%d, 1" % S_RETRY)
        A("s_mov_b32 s%d, 0" % S_SOFF)
        for b in range(4): A("v_mov_b32 v%d, 0xff800000" % (V_TM + b))
        A.label("M_fbloop")
        for g in range(8): A(self.load_instr(g))
        A("s_waitcnt vmcnt(0)")
        for u in range(2):
            for ks in range(4):
                for b in range(4):
                    d = vr(V_S + 4 * b, 4)
                    A(self.mfma(d, ar(self.kfrag(0, u * 4 + ks), 4), ar(A_Q + (b * 4 + ks) * 4, 4), d if ks else "0"))
            A("s_nop 7")
            for b in range(4):
                s = V_S + 4 * b
                A("v_max3_f32 v%d, v%d, v%d, v%d" % (V_TM + b, V_TM + b, s, s + 1))
                A("v_max3_f32 v%d, v%d, v%d, v%d" % (V_TM + b, V_TM + b, s + 2, s + 3))
            A("s_nop 1")
        A("s_add_u32 s%d, s%d, 0x4000" % (S_SOFF, S_SOFF))
        A("s_cmp_lt_u32 s%d, 0x40000" % S_SOFF)
        A("s_cbranch_scc1 M_fbloop")
        A("s_lshl_b32 s58, s3, 8")
        A("s_add_u32 s58, s58, %d" % LDS_Q)
        A("v_lshl_add_u32 v%d, v%d, 2, s58" % (V_P + 3, V_LANE))
        for b in range(3): A("v_xor_b32 v%d, 0x%x, v%d" % (V_P + b, (b + 1) << 8, V_P + 3))
        A("s_lshl_b32 s58, s3, 10")
        for b in range(4):
            A("v_add_u32 v%d, s58, v%d" % (V_P + 4 + b, V_P + b))
            A("ds_write_b32 v%d, v%d" % (V_P + 4 + b, V_TM + b))
        A("s_waitcnt lgkmcnt(0)")
        A("s_barrier")
        for b in range(4):
            for w in range(4): A("ds_read_b32 v%d, v%d offset:%d" % (V_S + 4 * b + w, V_P + b, w * 1024))
            A("s_waitcnt lgkmcnt(0)")
            A("v_max3_f32 v%d, v%d, v%d, v%d" % (V_TM + b, V_S + 4 * b, V_S + 4 * b + 1, V_S + 4 * b + 2))
            A("v_max_f32 v%d, v%d, v%d" % (V_TM + b, V_TM + b, V_S + 4 * b + 3))
        self.finishmax()
        A.label("M_restart")
        A("s_mov_b32 s%d, 2" % S_STAGE)
        A("s_mov_b32 s%d, s%d" % (S_SOFF, S_ROT))
        A("s_mov_b32 s%d, 0" % S_J)
        for g in range(PRE): self.emit_load(g)
        A("s_waitcnt vmcnt(0)")
        for x in self.qk_list(0): A(x)
        A("s_nop 7")
        A("s_branch M_go")
        A.raw('.section .rodata,"a"')
        A.raw(".p2align 6")
        A.raw(".amdhsa_kernel %s" % MAINK)
        A.raw("  .amdhsa_next_free_vgpr 512")
        A.raw("  .amdhsa_next_free_sgpr 102")
        A.raw("  .amdhsa_accum_offset 256")
        A.raw("  .amdhsa_group_segment_fixed_size 0")
        A.raw("  .amdhsa_kernarg_size 112")
        A.raw("  .amdhsa_user_sgpr_count 2")
        A.raw("  .amdhsa_user_sgpr_kernarg_segment_ptr 1")
        A.raw("  .amdhsa_system_sgpr_workgroup_id_x 1")
        A.raw("  .amdhsa_float_denorm_mode_32 3")
        A.raw(".end_amdhsa_kernel")
        return A.text()

    def epilogue(self):
        A = self.A
        PK = 196
        OWN = V_O + 96; LS = V_L + 12
        def pack(b):
            r_ = []
            for F in range(4):
                t = PK + 16 * (b & 1) + 4 * F
                o = V_O + (b * 8 + 2 * F) * 4
                r_ += ["v_cvt_pk_bf16_f32 v%d, v%d, v%d" % (t + j, o + 2 * j, o + 2 * j + 1) for j in range(4)]
                r_.append("ds_write_b128 v%d, %s offset:%d" % (V_XA + b, vr(t, 4), (b + 1) * 4096 + F * 1024))
            r_.append("ds_write_b128 v%d, %s offset:%d" % (V_XA + b, vr(V_L + 4 * b, 4), (b + 1) * 1024))
            x = V_L + 4 * b
            r_.append("v_add_f32 v%d, v%d, v%d" % (V_TM + 2 * b, x, x + 2))
            r_.append("v_add_f32 v%d, v%d, v%d" % (V_TM + 2 * b + 1, x + 1, x + 3))
            return r_
        q = []
        def extra(n, g):
            k = {62: (2 if g % 4 == 2 or g == 16 else 1 if g % 4 == 3 else self.xe), 63: self.x63, 64: 2}[n]
            for _ in range(k):
                if q and (len(q) > len(pack(0)) or g >= (2 if n == 62 else 3)): A(q.pop(0))
        self.gen_slot(61)
        q += pack(0)
        self.gen_slot(62, extra=extra)
        A("s_nop 0")
        q += pack(1)
        self.gen_slot(63, extra=extra)
        A("s_nop 1")
        q += pack(2)
        self.gen_slot(64, extra=extra)
        self.stamp("loopend")
        n_q = len(q)
        while q: A(q.pop(0))
        if n_q < 6: A("s_nop %d" % (5 - n_q))
        A("v_pk_add_f32 %s, %s, %s" % (vr(V_TM, 2), vr(V_TM, 2), vr(V_TM + 2, 2)))
        A("v_pk_add_f32 %s, %s, %s" % (vr(V_TM, 2), vr(V_TM, 2), vr(V_TM + 4, 2)))
        A("v_pk_add_f32 %s, %s, %s" % (vr(V_TM + 6, 2), vr(LS, 2), vr(LS + 2, 2)))
        A("v_pk_add_f32 %s, %s, %s" % (vr(V_TM, 2), vr(V_TM, 2), vr(V_TM + 6, 2)))
        A("s_mov_b32 s58, 0x%x" % f2u(2.0 ** self.thresh))
        A("v_add_f32 v%d, v%d, v%d" % (V_TM, V_TM, V_TM + 1))
        A("v_cmp_ngt_f32 vcc, s58, v%d" % V_TM)
        A("s_nop 4")
        A.c("a row sum out of range: the shift was unsafe, all four waves redo the pass with the true row maxima")
        A("s_cbranch_vccnz M_vote")
        A.label("M_voted")
        A("s_waitcnt lgkmcnt(0)")
        A("s_barrier")
        self.stamp("bar2", wait=True)
        RD = V_O; RL = V_O + 48; FL = V_O + 60
        n_l = [0]; dn = [0]
        def L(x): A(x); n_l[0] += 1; return n_l[0]
        def W(i):
            if i > dn[0]:
                A("s_waitcnt lgkmcnt(%d)" % (n_l[0] - i)); dn[0] = i
        reads = [(("o", F, k), "ds_read_b128 %s, v%d offset:%d" % (vr(RD + (F * 3 + k - 1) * 4, 4), V_XB, k * 4096 + F * 1024)) for F in range(4) for k in range(1, 4)]
        lr = [(("l", k), "ds_read_b128 %s, v%d offset:%d" % (vr(RL + 4 * (k - 1), 4), V_XB, k * 1024)) for k in range(1, 4)]
        reads = reads[:3] + [("fl", "ds_read_b32 v%d, v%d offset:12" % (FL, V_CA))] + lr + reads[3:]
        ix = {}
        def issue(n):
            for _ in range(n):
                if reads:
                    k_, x = reads.pop(0); ix[k_] = L(x)
        def st(E, r): return "buffer_store_dwordx2 %s, v%d, s[%d:%d], 0 offen offset:%d %s" % (vr(PK + 4 * r + 2 * E, 2), V_OFF, S_OSRD, S_OSRD + 3, r * 256 + E * 128, self.out_flags)
        def fin(F, pk):
            if pk: r_ = ["v_pk_mul_f32 %s, %s, %s" % (vr(OWN + 8 * F + 2 * j, 2), vr(OWN + 8 * F + 2 * j, 2), vr(LS + 2 * (j & 1), 2)) for j in range(4)]
            else: r_ = ["v_mul_f32 v%d, v%d, v%d" % (OWN + 8 * F + j, LS + (j & 3), OWN + 8 * F + j) for j in range(8)]
            for r in range(4):
                r_.append("v_cvt_pk_bf16_f32 v%d, v%d, v%d" % (PK + 4 * r + F, OWN + 8 * F + r, OWN + 8 * F + 4 + r))
                if self.wide:
                    if F == 3: r_.append("buffer_store_dwordx4 %s, v%d, s[%d:%d], 0 offen offset:%d %s" % (vr(PK + 4 * r, 4), V_OFF, S_OSRD, S_OSRD + 3, r * 256, self.out_flags))
                elif F & 1: r_.append(st(F >> 1, r))
            return r_
        issue(self.rd0)
        side = []
        for F in range(4):
            if F == 1:
                W(ix[("l", 3)])
                A("v_cmp_lt_u32 vcc, s%d, v%d" % (S_RETRY, FL))
                for k in range(3): side += ["v_add_f32 v%d, v%d, v%d" % (LS + j, LS + j, RL + 4 * k + j) for j in range(4)]
                side += ["v_rcp_f32 v%d, v%d" % (LS + r, LS + r) for r in range(4)]
                side += ["s_cbranch_vccnz M_fallback"]
            if F >= 2: side += fin(F - 2, False)
            for k in range(1, 4):
                W(ix[("o", F, k)])
                src = vr(RD + (F * 3 + k - 1) * 4, 4)
                for j in range(2):
                    d = vr(OWN + (2 * F + j) * 4, 4)
                    A(self.mfma(d, ar(A_SEL + 2 - 2 * j, 4), src, d))
                    issue(1)
                    for _ in range(3):
                        if side: A(side.pop(0))
        for x in side: A(x)
        self.stamp("fin")
        for x in fin(2, True) + fin(3, True): A(x)

    def finish_debug(self):
        A = self.A
        if self.stamps:
            self.stamp("stiss")
            A("s_waitcnt vmcnt(0)")
            self.stamp("end")
            A("s_lshl_b32 s58, s2, 2")
            A("s_add_u32 s58, s58, s3")
            A("s_lshl_b32 s58, s58, 8")
            A("s_add_u32 s58, s58, 0x%x" % STAMP)
            A("s_add_u32 s4, s%d, s58" % S_WS)
            A("s_addc_u32 s5, s%d, 0" % (S_WS + 1))
            A("s_waitcnt lgkmcnt(0)")
            A("v_mov_b32 v8, 0")
            A("s_mov_b64 exec, 1")
            for i in range(self.NST):
                for k in range(4): A("v_mov_b32 v%d, s%d" % (12 + k, 64 + 4 * i + k))
                A("global_store_dwordx4 v8, v[12:15], s[4:5] offset:%d" % (16 * i))
                A("s_nop 1")
            A("v_mov_b32 v12, s%d" % S_NPOLL)
            A("v_mov_b32 v13, s%d" % S_RETRY)
            A("global_store_dwordx2 v8, v[12:13], s[4:5] offset:240")
        if self.cal:
            A("s_cmp_lg_u32 s2, %d" % self.cal[3])
            A("s_cbranch_scc1 M_end")
            A("s_memrealtime s[6:7]")
            A("s_waitcnt lgkmcnt(0)")
            if self.cal[0] == "fixed":
                A("s_add_u32 s58, s64, %d" % (self.cal[1] * 100))
                A("s_sub_u32 s58, s58, s6")
                A("s_max_i32 s58, s58, 0")
            elif self.cal[0] == "npoll":
                A("s_mul_i32 s58, s%d, 1000" % S_NPOLL)
            else:
                A("s_sub_u32 s58, s%d, s%d" % (64 + 4 * self.cal[2], 64 + 4 * self.cal[1]))
                A("s_mul_i32 s58, s58, %d" % (self.cal[4] if len(self.cal) > 4 else 10))
            A("s_min_u32 s58, s58, 100000")
            A("s_add_u32 s58, s58, s6")
            A.label("M_spin")
            A("s_memrealtime s[6:7]")
            A("s_waitcnt lgkmcnt(0)")
            A("s_sub_u32 s59, s6, s58")
            A("s_cmp_lt_i32 s59, 0")
            A("s_cbranch_scc1 M_spin")

def gen(**kw): return Gen(**kw).gen()

if __name__ == "__main__":
    open(sys.argv[1], "w").write(gen())
```

```python
import sys, math, struct, copy

MAINK = "standalone__kv_cache_quant_pre_rope_vs_post_rope__prompt_kernel"
HEADER = open("standalone__kv_cache_quant_pre_rope_vs_post_rope__prompt.s.ref").read().split("; Override launch")[0]

DOC = """;
; One launch, 256 workgroups x 4 waves (one wave per SIMD, 512 registers). Workgroup (h = wg & 7, t = wg >> 3):
;     completed, carrying three progress bits and the producer's XCC id. A wave uses a tile only after it has seen the
;  3. wave w runs all 64 q rows against key quarter w: S^T = K Q^T - m (m enters as the MFMA C operand), P = exp2(S^T),
;     O += P V, row sums by one more MFMA. K/V fragments stream L2 -> registers, no LDS or barrier in the loop.
"""
STAMP = 16 << 20
CSCALE = math.log2(math.e) / math.sqrt(128.0)
def f2u(x): return struct.unpack("<I", struct.pack("<f", x))[0]

class Asm:
    def __init__(self): self.L = []
    def __call__(self, s): self.L.append("  " + s.rstrip())
    def label(self, s): self.L.append(s + ":")
    def raw(self, s): self.L.append(s)
    def c(self, s): self.L.append("  ; " + s)
    def text(self): return "\n".join(self.L) + "\n"

def vr(b, n=1, f="v"): return "%s%d" % (f, b) if n == 1 else "%s[%d:%d]" % (f, b, b + n - 1)
def ar(b, n=1): return vr(b, n, "a")
def sp(b): return "s[%d:%d]" % (b, b + 1)

V_PD = 0
V_LANE, V_RHO, V_G, V_FA, V_FV, V_L16 = 2, 3, 4, 5, 6, 7
V_KO0, V_KO1, V_VO0, V_VO1 = 8, 9, 10, 11
V_S = 12; V_P = 28; V_NEGM = 36; V_O = 52; V_L = 180
V_XB = 241; V_OFF = 240
V_DUM = 6; V_CA = 242; V_ONE = 243; V_TM = 244; V_XA = 252; V_POLL = 255
A_RING = 0; A_Q = 128; A_ONE = 192; A_SEL = 196
S_STAGE = 4; S_VBD = 5; S_FT = 6; S_FW = 7
S_Q, S_QK, S_KSC, S_KZ, S_QV, S_VSC, S_VZ, S_QCOS, S_QSIN, S_KCOS, S_KSIN, S_OUT = 8, 10, 12, 14, 16, 18, 20, 22, 24, 26, 28, 30
S_DBG = 32; S_WS = 34; S_EX = 36; S_WK = 37; S_H = 38; S_T = 39
S_SRD = 40; S_OSRD = 44; S_SOFF = 48; S_CNT = 49; S_RETRY = 50; S_SELF = 51
S_J = 52; S_ROT = 53; S_FWK = 54; S_NPOLL = 55; S_P0K = 61; S_CS = 62
LDS_Q = 65536; LDS_K = 81920; LDS_CNT = 86016; LDS_TOTAL = 86048
vVA, vVB, vKA, vKB, vTA, vTB, vVS, vKS, vQA, vQB, vKO, vVO, vQL, vKL = range(12, 26)
TMP = 28; QF = 36; QOUT = 44
VRA = 52; VOA = 68; KRAW = 76; KTAB = 108; INV = 108; QRAW = 140; QTAB = 156
VSR = 188; KSR = 190; KP = 192; KBO = 192; VRB = 208; VOB = 224; TF1 = 232
vKOB, vVOB = 190, 191
QA = 234
VBP = 108 + 4

class VM:
    def __init__(self, A): self.A = A; self.n = 0; self.done = 0
    def op(self, s):
        self.A(s); self.n += 1
        return self.n
    def wait(self, idx):
        if idx <= self.done: return
        k = self.n - idx
        assert 0 <= k < 64
        self.A("s_waitcnt vmcnt(%d)" % k)
        self.done = idx
    def clone(self):
        c = VM(self.A); c.n = self.n; c.done = self.done
        return c

class Gen:
    def __init__(self, stamps=False, smap=None, cal=None, tab="calc", PRE=22, P0=18, rot=0, xe=1, x63=1, rd0=7, wide=False, ldsz=None, limit=400, sleep=1,
                 thresh=24, force=None, raw_flags="", st_flags="sc0 sc1", ld_flags="sc1", out_flags="sc0 sc1", pref=True,
                 b2=30, b3=80, vbpos="m0", L1=4, L2=0, ppos=None, PA=None, gap=0, pat=0, onew=False, lal=3, lpad=0, prio=None, kst=None, vst=None, ebar=False, ksplit=False, qlate=False, vbpre=0, vbat="q3", vfirst=3, pubpos="pre", up3=True, pub2late=False, kunder=False):
        self.__dict__.update(locals()); del self.__dict__["self"]
        self.A = Asm(); self.full = tab == "full"; self.NST = 9
        self.smap = smap or ["start", "a1st", "a2st", "a1pub", "m0", "chk", "k0", "loopend", "end"]

    def stamp(self, name, wait=False):
        if self.stamps and name in self.smap:
            i = self.smap.index(name)
            self.A("s_memrealtime s[%d:%d]" % (64 + 4 * i, 65 + 4 * i))
            self.A("s_memtime s[%d:%d]" % (66 + 4 * i, 67 + 4 * i))
            if wait: self.A("s_waitcnt lgkmcnt(0)")

    def kfrag(self, tile, f): return A_RING + (tile % 2) * 64 + f * 4
    def vfrag(self, tile, e): return A_RING + (tile % 2) * 64 + 32 + e * 4
    def load_instr(self, g):
        tile, f = divmod(g, 16)
        voff = [V_KO0, V_KO1, V_VO0, V_VO1][f // 4]
        return "buffer_load_dwordx4 %s, v%d, s[%d:%d], s%d offen offset:%d %s" % (ar(self.kfrag(tile, f), 4), voff, S_SRD, S_SRD + 3, S_SOFF, (f % 4) * 1024, self.ld_flags)
    def emit_load(self, g, vm=None):
        if g % 16 == 0 and g:
            if self.rot:
                self.A("s_add_u32 s%d, s%d, 0x4000" % (S_J, S_J))
                self.A("s_xor_b32 s%d, s%d, s%d" % (S_SOFF, S_J, S_ROT))
            else: self.A("s_add_u32 s%d, s%d, 0x4000" % (S_SOFF, S_SOFF))
        if vm: return vm.op(self.load_instr(g))
        self.A(self.load_instr(g))
    def mfma(self, d, a, b, c): return "v_mfma_f32_16x16x32_bf16 %s, %s, %s, %s" % (d, a, b, c)
    def qk_list(self, n):
        tile, qb = divmod(n, 4)
        out = []
        for u in range(2):
            d = vr(V_S + (n & 1) * 8 + u * 4, 4)
            for ks in range(4):
                out.append(self.mfma(d, ar(self.kfrag(tile, u * 4 + ks), 4), ar(A_Q + (qb * 4 + ks) * 4, 4), d if ks else vr(V_NEGM + qb * 4, 4)))
        return out
    def pv_list(self, n):
        tile, qb = divmod(n, 4)
        p = vr(V_P + (n & 1) * 4, 4)
        out = []
        for e in range(8):
            d = vr(V_O + (qb * 8 + e) * 4, 4)
            out.append(self.mfma(d, p, ar(self.vfrag(tile, e), 4), d if tile else "0"))
        d = vr(V_L + qb * 4, 4)
        out.append(self.mfma(d, p, ar(A_ONE, 4), d if tile else "0"))
        return out
    def gen_slot(self, n, extra=None, last=None):
        A = self.A
        qk = self.qk_list(n + 1) if n + 1 < 64 else []
        pv = self.pv_list(n - 1) if n - 1 >= 0 else []
        sm = 0 <= n < 64
        mf = [(x, ("K", n + 1, i)) for i, x in enumerate(qk)] + [(x, ("V", n - 1, i)) for i, x in enumerate(pv)]
        issued = [self.PRE + 4 * min(n, 61)]
        def need(tag):
            kind, un, i = tag
            tile, qb = divmod(un, 4)
            if qb != 0 or i not in ((0,) if self.onew else (0, 4)): return
            g = 16 * tile + (8 if kind == "V" else 0) + i + (7 if self.onew else 3)
            k = issued[0] - (g + 1)
            assert 0 <= k < 64, (n, g, k)
            A("s_waitcnt vmcnt(%d)" % k)
        fill = []
        for k in range(4):
            if self.pat == 0 or len(mf) != 17: fill += [("exp", 2 * k), ("exp", 2 * k + 1), ("load", k), ("cvt", k)]
            elif self.pat == 1: fill += [("exp", 2 * k), ("exp", 2 * k + 1), ("cvt", k), ("load", k)]
            elif self.pat == 2: fill += [("exp", 2 * k), ("exp", 2 * k + 1), ("both", k), ("none", k)]
        def emit_fill(f):
            if f[0] == "exp":
                if sm: A("v_exp_f32 v%d, v%d" % ((V_S + (n & 1) * 8 + f[1],) * 2))
            elif f[0] == "cvt":
                r = V_S + (n & 1) * 8 + 2 * f[1]
                if sm: A("v_cvt_pk_bf16_f32 v%d, v%d, v%d" % (V_P + (n & 1) * 4 + f[1], r, r + 1))
            elif f[0] == "none": pass
            elif f[0] == "both":
                emit_fill(("cvt", f[1])); emit_fill(("load", f[1]))
            elif n <= 60:
                self.emit_load(issued[0]); issued[0] += 1
        per = 1 if len(mf) == 17 else 2
        fi = 0
        for g, (m, tag) in enumerate(mf):
            need(tag)
            if last and g == len(mf) - 1:
                for x in last: A(x)
            A(m)
            if extra: extra(n, g)
            for _ in range(per):
                if fi < 16:
                    emit_fill(fill[fi]); fi += 1
        assert fi == 16
    def finishmax(self):
        A = self.A
        for swap in ("v_permlane16_swap_b32", "v_permlane32_swap_b32"):
            for b in range(4): A("v_mov_b32 v%d, v%d" % (V_TM + 4 + b, V_TM + b))
            A("s_nop 1")
            for b in range(4): A("%s v%d, v%d" % (swap, V_TM + b, V_TM + 4 + b))
            A("s_nop 1")
            for b in range(4): A("v_max_f32 v%d, v%d, v%d" % (V_TM + b, V_TM + b, V_TM + 4 + b))
        for b in range(4):
            for k in range(4): A("v_xor_b32 v%d, 0x80000000, v%d" % (V_NEGM + 4 * b + k, V_TM + b))
    def epi_addrs(self):
        A = self.A
        A("s_lshl_b32 s58, s3, 14")
        A("v_add_u32 v%d, s58, v%d" % (V_XB, V_L16))
        for b in range(3): A("v_xor_b32 v%d, 0x%x, v%d" % (V_XA + b, (b + 1) << 14, V_XB))
        A("v_lshlrev_b32 v%d, 10, v%d" % (V_OFF, V_G))
        A("v_lshl_add_u32 v%d, v%d, %d, v%d" % (V_OFF, V_RHO, 4 if self.wide else 3, V_OFF))

    def kv_in_addrs(self, sT, sWV, sWK):
        A = self.A
        c, r = V_RHO, V_G
        A("s_lshl_b32 s56, s%d, 6" % sT)
        A("s_lshl_b32 s57, s%d, 3" % sWK)
        A("s_add_u32 s%d, s56, s57" % S_P0K)
        A("s_lshl_b32 s57, s%d, 3" % sWV)
        A("s_add_u32 s56, s56, s57")
        A("s_lshl_b32 s57, s%d, 11" % S_H)
        A("s_add_u32 s56, s56, s57")
        A("s_add_u32 s57, s57, s%d" % S_P0K)
        A("s_lshl_b32 s58, s56, 9")
        A("v_lshl_add_u32 v%d, v%d, 3, s58" % (vVA, V_LANE))
        A("v_add_u32 v%d, 16384, v%d" % (vVB, vVA))
        A("v_lshlrev_b32 v0, 8, v%d" % r)
        A("v_lshl_add_u32 v0, v%d, 3, v0" % c)
        A("s_lshl_b32 s58, s57, 8")
        A("v_add_u32 v%d, s58, v0" % vQA)
        A("v_add_u32 v%d, 8192, v%d" % (vQB, vQA))
        A("v_lshlrev_b32 v%d, 1, v%d" % (vKA, vQA))
        A("v_lshlrev_b32 v%d, 1, v%d" % (vKB, vQB))
        if self.tab != "calc":
            A("s_lshl_b32 s58, s%d, 8" % S_P0K)
            A("v_add_u32 v%d, s58, v0" % vTA)
            A("v_add_u32 v%d, 8192, v%d" % (vTB, vTA))
        A("s_lshl_b32 s58, s56, 3")
        A("v_lshrrev_b32 v0, 3, v%d" % c)
        A("v_lshl_add_u32 v%d, v0, 8, s58" % vVS)
        A("v_and_b32 v1, 7, v%d" % c)
        A("v_lshl_add_u32 v%d, v1, 3, v%d" % (vVS, vVS))
        A("v_lshl_add_u32 v%d, v%d, 1, v%d" % (vVS, r, vVS))
        A("s_lshl_b32 s58, s57, 3")
        A("v_lshl_add_u32 v%d, v0, 1, s58" % vKS)
        A("v_lshl_add_u32 v%d, v%d, 3, v%d" % (vKS, r, vKS))
        A("v_bfe_u32 v1, v%d, 2, 1" % c)
        A("v_lshl_add_u32 v%d, v1, 8, v%d" % (vKS, vKS))
        A("v_bfe_u32 v1, v%d, 1, 1" % c)
        A("v_lshl_add_u32 v%d, v1, 5, v%d" % (vKS, vKS))
        A("v_and_b32 v1, 1, v%d" % c)
        A("v_lshl_add_u32 v%d, v1, 2, v%d" % (vKS, vKS))
        for k in (VSR, VSR + 1, KSR, KSR + 1): A("v_mov_b32 v%d, 0" % k)
    def kv_out_addrs(self, X, sT, sWV, sWK):
        A = self.A
        c, r = V_RHO, V_G
        dK, dV = ((vKO, vVO), (vKOB, vVOB))[X]
        A("s_lshr_b32 s56, s%d, 3" % sT)
        A("s_lshl_b32 s56, s56, 18")
        A("s_lshl_b32 s57, s%d, 20" % S_H)
        A("s_add_u32 s56, s56, s57")
        if X == 0:
            A("s_bfe_u32 s57, s%d, 0x20001" % sT)
            A("s_lshl_b32 s57, s57, 14")
            A("s_add_u32 s56, s56, s57")
            A("s_and_b32 s57, s%d, 1" % sT)
            A("s_lshl_b32 s57, s57, 9")
            A("s_add_u32 s56, s56, s57")
            A("s_and_b32 s57, s%d, 1" % sWV)
            A("s_lshl_b32 s57, s57, 8")
            A("s_add_u32 s56, s56, s57")
            A("s_lshr_b32 s57, s%d, 1" % sWK)
            A("s_lshl_b32 s57, s57, 16")
            A("s_lshr_b32 s58, s%d, 1" % sWV)
            A("s_lshl_b32 s58, s58, 16")
        else:
            A("s_and_b32 s57, s%d, 7" % sT)
            A("s_lshl_b32 s57, s57, 14")
            A("s_add_u32 s56, s56, s57")
            A("s_add_u32 s56, s56, 0x20000")
            A("s_lshl_b32 s57, s%d, 8" % sWK)
            A("s_lshl_b32 s58, s%d, 8" % sWV)
        A("s_add_u32 s57, s57, s56")
        A("s_add_u32 s57, s57, 4096")
        A("s_add_u32 s58, s58, s56")
        A("s_add_u32 s58, s58, 8192")
        A("v_lshrrev_b32 v0, 2, v%d" % c)
        A("v_lshl_add_u32 v%d, v0, 10, s57" % dK)
        A("v_and_b32 v0, 3, v%d" % c)
        A("v_lshl_add_u32 v%d, v0, 6, v%d" % (dK, dK))
        A("v_lshl_add_u32 v%d, v%d, 4, v%d" % (dK, r, dK))
        if self.wide:
            A("v_lshl_add_u32 v%d, v0, 11, s58" % dV)
            A("v_lshrrev_b32 v0, 2, v%d" % V_LANE)
            A("v_lshl_add_u32 v%d, v0, 4, v%d" % (dV, dV))
            return
        A("v_lshrrev_b32 v0, 5, v%d" % V_LANE)
        A("v_lshl_add_u32 v%d, v0, 12, s58" % dV)
        A("v_and_b32 v0, 1, v%d" % V_LANE)
        A("v_lshl_add_u32 v%d, v0, 11, v%d" % (dV, dV))
        A("v_bfe_u32 v0, v%d, 1, 4" % V_LANE)
        A("v_lshl_add_u32 v%d, v0, 4, v%d" % (dV, dV))
    def ld_scales(self):
        return ["global_load_short_d16_hi v%d, v%d, %s" % (VSR, vVS, sp(S_VSC)),
                "global_load_short_d16_hi v%d, v%d, %s" % (VSR + 1, vVS, sp(S_VZ)),
                "global_load_short_d16_hi v%d, v%d, %s" % (KSR, vKS, sp(S_KSC)),
                "global_load_short_d16_hi v%d, v%d, %s" % (KSR + 1, vKS, sp(S_KZ))]
    def ld_v(self, X):
        return ["global_load_dwordx2 %s, v%d, %s offset:%d %s" % (vr((VRA, VRB)[X] + 2 * j, 2), (vVA, vVB)[X], sp(S_QV), j * 512, self.raw_flags) for j in range(8)]
    def ld_tab(self, it, dst, scos, ssin):
        X, u = divmod(it, 2)
        vt = (vTA, vTB)[X]
        L = ["global_load_dwordx2 %s, v%d, %s offset:%d" % (vr(dst, 2), vt, sp(scos), u * 1024),
             "global_load_dwordx2 %s, v%d, %s offset:%d" % (vr(dst + 2, 2), vt, sp(ssin), u * 1024)]
        if self.full:
            L += ["global_load_dwordx2 %s, v%d, %s offset:%d" % (vr(dst + 4, 2), vt, sp(scos), u * 1024 + 128),
                  "global_load_dwordx2 %s, v%d, %s offset:%d" % (vr(dst + 6, 2), vt, sp(ssin), u * 1024 + 128)]
        return L
    def ld_k(self, it, alone=False):
        X, u = divmod(it, 2)
        va = (vKA, vKB)[X]
        own = self.tab in ("full", "half") or (self.tab == "shared" and (alone or it < 2))
        L = self.ld_tab(it, KTAB + 8 * it, S_KCOS, S_KSIN) if own else []
        return L + ["global_load_dwordx4 %s, v%d, %s offset:%d %s" % (vr(KRAW + 8 * it, 4), va, sp(S_QK), u * 2048, self.raw_flags),
                    "global_load_dwordx4 %s, v%d, %s offset:%d %s" % (vr(KRAW + 8 * it + 4, 4), va, sp(S_QK), u * 2048 + 256, self.raw_flags)]
    def ld_q(self, it):
        X, u = divmod(it, 2)
        vq = (vQA, vQB)[X]
        L = self.ld_tab(it, QTAB + 8 * it, S_QCOS, S_QSIN) if self.tab in ("full", "half") else []
        if self.tab == "shared" and it >= 2: L = self.ld_tab(it, KTAB + 8 * it, S_KCOS, S_KSIN)
        return L + ["global_load_dwordx2 %s, v%d, %s offset:%d %s" % (vr(QRAW + 4 * it, 2), vq, sp(S_Q), u * 1024, self.raw_flags),
                    "global_load_dwordx2 %s, v%d, %s offset:%d %s" % (vr(QRAW + 4 * it + 2, 2), vq, sp(S_Q), u * 1024 + 128, self.raw_flags)]
    def tf(self, it):
        if self.tab in ("shared", "calc"):
            b = QTAB + 8 * it
            return (b, b + 4, b, b + 4)
        if self.full: return (TF1, TF1 + 4, V_TM, V_TM + 4)
        return (TF1, TF1 + 4, TF1, TF1 + 4)
    def unpack(self, dst, src):
        for w in range(2):
            self.A("v_lshlrev_b32 v%d, 16, v%d" % (dst + 2 * w, src + w))
            self.A("v_and_b32 v%d, 0xffff0000, v%d" % (dst + 2 * w + 1, src + w))
    def calc_tabs(self, items):
        A = self.A
        if 0 in items:
            A("v_lshlrev_b32 v0, 2, v%d" % V_RHO)
            A("v_cvt_f32_u32 v0, v0")
            A("s_mov_b32 s59, 0x%x" % f2u(-math.log2(10000.0) / 64))
            for x in range(4):
                if x: A("v_add_f32 v1, %s, v0" % ("1.0", "2.0", "0x40400000")[x - 1])
                A("v_mul_f32 v%d, s59, v%d" % (INV + x, 1 if x else 0))
            for x in range(4): A("v_exp_f32 v%d, v%d" % (INV + x, INV + x))
        A("v_add_u32 v0, s%d, v%d" % (S_P0K, V_G))
        for it in items:
            X, u = divmod(it, 2)
            A("v_add_u32 v1, %d, v0" % (32 * X + 4 * u))
            A("v_cvt_f32_u32 v1, v1")
            b = QTAB + 8 * it
            for x in range(4): A("v_mul_f32 v%d, v1, v%d" % (b + x, INV + x))
            for x in range(4): A("v_mul_f32 v%d, 0.15915494, v%d" % (b + x, b + x))
            for x in range(4): A("v_fract_f32 v%d, v%d" % (b + x, b + x))
            for x in range(4): A("v_sin_f32 v%d, v%d" % (b + 4 + x, b + x))
            for x in range(4): A("v_cos_f32 v%d, v%d" % (b + x, b + x))
            for p in (2, 3, 0, 1): A("v_cvt_pk_bf16_f32 v%d, v%d, v%d" % (TMP + 4 + p, b + 2 * p, b + 2 * p + 1))
            self.unpack(b, TMP + 4); self.unpack(b + 4, TMP + 6)
    def rope(self, it, src, dst, scale=False):
        A = self.A
        cl, sl, ch, sh = self.tf(it)
        for p in range(2):
            A("v_pk_mul_f32 %s, %s, %s" % (vr(TMP + 2 * p, 2), vr(src + 2 * p, 2), vr(cl + 2 * p, 2)))
            A("v_pk_mul_f32 %s, %s, %s" % (vr(TMP + 4 + 2 * p, 2), vr(src + 4 + 2 * p, 2), vr(ch + 2 * p, 2)))
        for p in range(2):
            A("v_pk_fma_f32 %s, %s, %s, %s neg_lo:[1,0,0] neg_hi:[1,0,0]" % (vr(TMP + 2 * p, 2), vr(src + 4 + 2 * p, 2), vr(sl + 2 * p, 2), vr(TMP + 2 * p, 2)))
            A("v_pk_fma_f32 %s, %s, %s, %s" % (vr(TMP + 4 + 2 * p, 2), vr(src + 2 * p, 2), vr(sh + 2 * p, 2), vr(TMP + 4 + 2 * p, 2)))
        if scale:
            for p in range(4): A("v_pk_mul_f32 %s, %s, %s" % (vr(TMP + 2 * p, 2), vr(TMP + 2 * p, 2), sp(S_CS)))
        for x in range(4): A("v_cvt_pk_bf16_f32 v%d, v%d, v%d" % (dst + x, TMP + 2 * x, TMP + 2 * x + 1))
    def do_scales(self):
        A = self.A
        A("v_mul_f32 v%d, 0x%x, v%d" % (KSR, f2u(CSCALE), KSR))
        A("v_mul_f32 v%d, v%d, v%d" % (KSR + 1, KSR + 1, KSR))
        for j in range(8):
            A("ds_swizzle_b32 v%d, v%d offset:swizzle(BROADCAST,8,%d)" % (KP + 2 * j, KSR, j))
            A("ds_swizzle_b32 v%d, v%d offset:swizzle(BROADCAST,8,%d)" % (KP + 2 * j + 1, KSR + 1, j))
    def do_vpair(self, X, p):
        A = self.A
        raw, out = ((VRA, VOA), (VRB, VOB))[X]
        a = raw + 4 * p
        k = 8 * X + 2 * p
        for x in range(4): A("v_cvt_f32_i32 v%d, v%d" % (a + x, a + x))
        for x in range(4): A("v_subrev_f32_dpp v%d, v%d, v%d row_newbcast:%d row_mask:0xf bank_mask:0xf" % (a + x, VSR + 1, a + x, k + x // 2))
        for x in range(4): A("v_mul_f32_dpp v%d, v%d, v%d row_newbcast:%d row_mask:0xf bank_mask:0xf" % (a + x, VSR, a + x, k + x // 2))
        for x in range(2): A("v_cvt_pk_bf16_f32 v%d, v%d, v%d" % (out + 4 * x + p, a + x, a + 2 + x))
    def st_v(self, X):
        return ["global_store_dwordx4 v%d, %s, %s offset:%d %s" % ((vVO, vVOB)[X], vr((VOA, VOB)[X] + 4 * x, 4), sp(S_WS), x * 1024, self.st_flags) for x in range(2)]
    def do_tab(self, it, raw):
        t = self.tf(it)
        for k in range(4 if self.full else 2): self.unpack(t[k], raw + 8 * it + 2 * k)
    def kout(self, it): return KRAW + 8 * it if it < 2 else KBO + 4 * (it - 2)
    def do_k(self, it):
        A = self.A
        cc = KRAW + 8 * it
        for x in range(8): A("v_cvt_f32_i32 v%d, v%d" % (cc + x, cc + x))
        for q in range(4):
            d, p = cc + 2 * q, KP + 4 * it + 2 * (q // 2)
            A("v_pk_fma_f32 %s, %s, %s, %s op_sel:[0,0,1] op_sel_hi:[1,0,1] neg_lo:[0,0,1] neg_hi:[0,0,1]" % (vr(d, 2), vr(d, 2), vr(p, 2), vr(p, 2)))
        self.rope(it, cc, self.kout(it))
    def st_k(self, it):
        X, u = divmod(it, 2)
        return "global_store_dwordx4 v%d, %s, %s offset:%d %s" % ((vKO, vKOB)[X], vr(self.kout(it), 4), sp(S_WS), (u - 1) * 4096, self.st_flags)
    def do_q(self, it):
        X, u = divmod(it, 2)
        b = QRAW + 4 * it
        self.unpack(QF, b); self.unpack(QF + 4, b + 2)
        o = QOUT + 4 * (it & 1)
        self.rope(it, QF, o)
        self.A("ds_write_b128 v%d, %s offset:%d" % (vQL, vr(o, 4), X * 8192 + u * 64))

    def poll_instr(self): return "global_load_dwordx2 %s, v%d, %s sc1" % (vr(V_PD, 2), V_POLL, sp(S_DBG))
    def check_flags(self, level, ok=None, bad=None):
        A = self.A
        A("v_readfirstlane_b32 s58, v%d" % V_PD)
        A("v_readfirstlane_b32 s59, v%d" % (V_PD + 1))
        A("s_nop 2")
        A("s_xor_b32 s58, s58, s%d" % S_EX)
        A("s_xor_b32 s59, s59, s%d" % S_EX)
        A("s_or_b32 s58, s58, s59")
        if level < 2: A("s_and_b32 s58, s58, 0x%x" % ((0x9f9f9f9f, 0xbfbfbfbf)[level]))
        if bad: A("s_cbranch_scc1 %s" % bad)
        else: A("s_cbranch_scc0 %s" % ok)
    def slow_poll(self, name, level, ok, bad):
        A = self.A
        A.label(name)
        if self.sleep: A("s_sleep %d" % self.sleep)
        A(self.poll_instr())
        A("s_add_u32 s%d, s%d, 1" % (S_NPOLL, S_NPOLL))
        A("s_waitcnt vmcnt(0)")
        self.check_flags(level, ok=ok)
        A("s_cmp_lt_u32 s%d, %d" % (S_NPOLL, self.limit))
        A("s_cbranch_scc1 %s" % name)
        A("s_branch %s" % bad)
    def publish(self, level, name):
        A = self.A
        if (self.force == "t1" and level >= 1) or (self.force == "t2" and level == 2): return
        A("s_mov_b64 exec, 1")
        A("ds_add_rtn_u32 v%d, v%d, v%d offset:%d" % (V_FV, V_CA, V_ONE, 4 * level))
        A("s_and_b32 s59, s%d, 0x%x" % (S_EX, (0x1f, 0x3f, 0x7f)[level]))
        A("s_waitcnt lgkmcnt(0)")
        A("v_readfirstlane_b32 s58, v%d" % V_FV)
        A("v_mov_b32 v%d, s59" % V_FV)
        A("s_nop 2")
        A("s_cmp_eq_u32 s58, 3")
        A("s_cbranch_scc0 %s" % name)
        A("global_store_byte v%d, v%d, %s" % (V_FA, V_FV, sp(S_DBG)))
        A.label(name)
        A("s_mov_b64 exec, -1")

    def gen(self):
        A = self.A
        PRE = self.PRE
        A.raw(HEADER.rstrip("\n"))
        A.raw("; @launch grid=(256,1,1) block=(256,1,1) lds=%d" % (self.ldsz or LDS_TOTAL))
        A.raw(DOC.rstrip("\n"))
        A.raw('.amdgcn_target "amdgcn-amd-amdhsa--gfx950"')
        A.raw(".text")
        A.raw(".globl %s" % MAINK)
        A.raw(".p2align 8")
        A.raw(".type %s,@function" % MAINK)
        A.label(MAINK)
        A("s_cmp_ge_u32 s2, 256")
        A("s_cbranch_scc1 M_end")
        A("s_load_dwordx16 s[8:23], s[0:1], 0")
        if not self.ksplit:
            A("s_load_dwordx8 s[24:31], s[0:1], 64")
            A("s_load_dwordx4 s[32:35], s[0:1], 96")
        self.stamp("start")
        vm = VM(A)
        if self.pref:
            A.c("pull this kernel's own code towards L2 before the data stream saturates the fabric")
            A("s_getpc_b64 s[56:57]")
            A("v_lshlrev_b32 v1, 6, v0")
            A("v_min_u32 v1, M_codeend-%s-64, v1" % MAINK)
            vm.op("global_load_dword v%d, v1, s[56:57]" % V_DUM)
        A("v_lshrrev_b32 v1, 6, v0")
        A("v_and_b32 v%d, 63, v0" % V_LANE)
        A("v_readfirstlane_b32 s3, v1")
        A("v_and_b32 v%d, 15, v%d" % (V_RHO, V_LANE))
        A("v_lshrrev_b32 v%d, 4, v%d" % (V_G, V_LANE))
        A("s_and_b32 s%d, s2, 7" % S_H)
        A("s_lshr_b32 s%d, s2, 3" % S_T)
        A("s_xor_b32 s%d, s3, 2" % S_WK)
        A.c("input offsets; waves 0,1 convert V rows first, waves 2,3 K rows first")
        self.kv_in_addrs(S_T, 3, S_WK)
        A("s_waitcnt lgkmcnt(0)")
        for x in self.ld_scales(): i_sc = vm.op(x)
        lv, lk = self.ld_v(0), self.ld_k(0) + self.ld_k(1)
        nk = len(self.ld_k(0))
        base = vm.n
        def burst(name, first, second):
            L = ["s_cmp_lt_u32 s3, 2", "s_cbranch_scc0 %s_b" % name] + first + ["s_branch %s_e" % name, "%s_b:" % name] + second + ["%s_e:" % name]
            return L
        def emit(L):
            for x in L:
                if x.endswith(":"): A.label(x[:-1])
                else: A(x)
        emit(burst("M_ld1", lv, lk))
        if self.ksplit:
            assert self.ebar and self.tab == "calc"
            A("s_load_dwordx8 s[24:31], s[0:1], 64")
            A("s_load_dwordx4 s[32:35], s[0:1], 96")
        vm.n += len(lv) + len(lk)
        iV = [{("v", j): base + 1 + j for j in range(8)}, {("v", j): base + len(lk) + 1 + j for j in range(8)}]
        for j in range(len(lk)):
            iV[0][("k", j)] = base + 8 + 1 + j
            iV[1][("k", j)] = base + 1 + j
        idx = {}
        def ldg(g): return self.ld_q(int(g[1])) if g[0] == "q" else self.ld_k(int(g[1]))
        seq = ["q0", "q1", "q2", "q3", "k2", "k3"]
        G1, G2, G3 = seq[:self.L1], seq[self.L1:self.L1 + self.L2], seq[self.L1 + self.L2:]
        q01 = []
        for g in G1:
            for j, x in enumerate(ldg(g)):
                q01.append(x); vm.n += 1; idx[(g, j)] = vm.n
        mark = len(A.L)
        A("v_mov_b32 v%d, %d" % (V_CA, LDS_CNT))
        A("v_mov_b32 v%d, 1" % V_ONE)
        for k in range(4): A("v_mov_b32 v%d, 0" % (TMP + k))
        A("ds_write_b128 v%d, %s" % (V_CA, vr(TMP, 4)))
        if self.prio == "rank": A("ds_write_b32 v%d, v%d offset:16" % (V_CA, TMP))
        if self.tab == "calc": self.calc_tabs([0, 1])
        self.kv_out_addrs(0, S_T, 3, S_WK)
        A("s_lshl_b32 s58, s3, 6")
        A("s_add_u32 s58, s58, %d" % LDS_K)
        A("v_lshl_add_u32 v%d, v%d, 8, s58" % (vKL, V_RHO))
        A("v_lshl_add_u32 v%d, v%d, 4, v%d" % (vKL, V_G, vKL))
        def qaddrs():
            A("s_lshl_b32 s59, s3, 12")
            A("s_add_u32 s59, s59, %d" % LDS_Q)
            A("v_add_u32 v%d, s59, v%d" % (QA + 3, V_L16))
            for b in range(3): A("v_xor_b32 v%d, 0x%x, v%d" % (QA + b, (b + 1) << 12, QA + 3))
            A("v_and_b32 v%d, 0x330, v%d" % (QA + 4, V_L16))
            A("v_add_u32 v%d, %d, v%d" % (QA + 4, LDS_K, QA + 4))
        def setup2():
            if self.tab == "calc": self.calc_tabs([2, 3])
            A("s_lshr_b32 s58, s%d, 1" % S_WK)
            A("s_lshl_b32 s58, s58, 12")
            A("s_and_b32 s59, s3, 1")
            A("s_lshl_b32 s59, s59, 7")
            A("s_add_u32 s58, s58, s59")
            A("s_add_u32 s58, s58, %d" % LDS_Q)
            A("v_lshl_add_u32 v%d, v%d, 8, s58" % (vQL, V_RHO))
            A("v_lshl_add_u32 v%d, v%d, 4, v%d" % (vQL, V_G, vQL))
            A("s_getreg_b32 s58, hwreg(HW_REG_XCC_ID, 0, 4)")
            if self.force == "remote": A("s_and_b32 s58, s%d, 1" % S_T)
            A("s_mul_i32 s58, s58, 0x01010101")
            A("s_or_b32 s%d, s58, 0x70707070" % S_EX)
            A("s_lshl_b32 s58, s%d, 5" % S_H)
            A("s_lshl_b32 s59, s3, 3")
            A("s_add_u32 s59, s59, s58")
            A("v_mov_b32 v%d, s59" % V_POLL)
            A("s_add_u32 s58, s58, s%d" % S_T)
            A("v_mov_b32 v%d, s58" % V_FA)
        def setup3():
            A("s_lshl_b32 s58, s%d, 5" % S_H)
            A("s_add_u32 s58, s58, s%d" % S_T)
            A("s_lshl_b32 s58, s58, 14")
            A("s_lshl_b32 s59, s3, 12")
            A("s_add_u32 s58, s58, s59")
            A("s_add_u32 s%d, s%d, s58" % (S_OSRD, S_OUT))
            A("s_addc_u32 s%d, s%d, 0" % (S_OSRD + 1, S_OUT + 1))
            A("s_mov_b32 s%d, 0x1000" % (S_OSRD + 2))
            A("s_mov_b32 s%d, 0x20000" % (S_OSRD + 3))
            A("v_lshrrev_b32 v0, 2, v%d" % V_RHO)
            A("v_lshlrev_b32 v0, 8, v0")
            A("v_lshl_add_u32 v0, v%d, 6, v0" % V_G)
            A("v_and_b32 v1, 3, v%d" % V_RHO)
            A("v_lshl_add_u32 v%d, v1, 4, v0" % V_KO0)
            A("v_add_u32 v%d, 4096, v%d" % (V_KO1, V_KO0))
            A("v_lshlrev_b32 v%d, 4, v%d" % (V_L16, V_LANE))
            A("v_mov_b32 v0, 0x3f803f80")
            A("v_add_u32 v%d, 8192, v%d" % (V_VO0, V_L16))
            A("v_add_u32 v%d, 12288, v%d" % (V_VO1, V_L16))
            for k in range(4): A("v_accvgpr_write_b32 a%d, v0" % (A_ONE + k))
            A("v_lshrrev_b32 v0, 2, v%d" % V_RHO)
            A("v_cmp_eq_u32 vcc, v0, v%d" % V_G)
            A("v_lshlrev_b32 v1, 4, v1")
            A("v_mov_b32 v0, 0x3f80")
            A("v_cndmask_b32 v%d, 0, v0, vcc" % TMP)
            A("v_mov_b32 v%d, 0" % (TMP + 1))
            A("v_lshlrev_b64 %s, v1, %s" % (vr(TMP, 2), vr(TMP, 2)))
            for k in (0, 1, 4, 5): A("v_accvgpr_write_b32 a%d, 0" % (A_SEL + k))
            for k in range(2): A("v_accvgpr_write_b32 a%d, v%d" % (A_SEL + 2 + k, TMP + k))
            A("s_lshl_b32 s58, s%d, 20" % S_H)
            A("s_lshl_b32 s59, s3, 18")
            A("s_add_u32 s58, s58, s59")
            A("s_add_u32 s%d, s%d, s58" % (S_SRD, S_WS))
            A("s_addc_u32 s%d, s%d, 0" % (S_SRD + 1, S_WS + 1))
            A("s_mov_b32 s%d, 0x40000" % (S_SRD + 2))
            A("s_mov_b32 s%d, 0x20000" % (S_SRD + 3))
            for s_ in (S_RETRY, S_NPOLL, S_STAGE, S_VBD, S_J): A("s_mov_b32 s%d, 0" % s_)
            A("s_and_b32 s%d, s%d, %d" % (S_ROT, S_T, self.rot))
            A("s_lshl_b32 s%d, s%d, 14" % (S_ROT, S_ROT))
            A("s_mov_b32 s%d, s%d" % (S_SOFF, S_ROT))
            if self.tab in ("calc", "shared"): qaddrs()
            self.epi_addrs()
        if self.up3: setup3()
        body = A.L[mark:]; del A.L[mark:]
        def safe(i):
            while i < len(body) and ("s_addc" in body[i] or "s_cbranch" in body[i] or "s_cselect" in body[i]): i += 1
            return min(i, len(body))
        p2 = safe(self.b2); p3 = safe(max(self.b3, p2))
        A.L += body[:p2]
        if self.ebar:
            A("s_waitcnt lgkmcnt(0)")
            A("s_barrier")
        emit(burst("M_ld2", lk, lv))
        A.L += body[p2:p3]
        if not self.qlate:
            for x in q01: A(x)
        A.L += body[p3:]
        if not self.ebar:
            A("s_waitcnt lgkmcnt(0)")
            A("s_barrier")
        if self.qlate:
            A("s_waitcnt vmcnt(%d)" % (len(lv) + len(lk))); vm.done = i_sc
            self.do_scales()
            for x in q01: A(x)
        else:
            vm.wait(i_sc)
            self.do_scales()
        def vpart(v, I):
            for p in range(4):
                v.wait(I[("v", 2 * p + 1)])
                self.do_vpair(0, p)
            for x in self.st_v(0): v.op(x)
        def kpart(v, I):
            for it in range(2):
                if nk > 2:
                    v.wait(I[("k", it * nk + nk - 3)])
                    self.do_tab(it, KTAB)
                v.wait(I[("k", it * nk + nk - 1)])
                if it == 0: A("s_waitcnt lgkmcnt(0)")
                self.do_k(it)
                v.op(self.st_k(it))
                if it == 0: A("ds_write_b128 v%d, %s" % (vKL, vr(self.kout(0), 4)))
        def half(h):
            A("s_cmp_lt_u32 s3, 2")
            A("s_cbranch_scc0 M_h%db" % h)
            v0_ = vm.clone(); (vpart, kpart)[h](v0_, iV[0])
            A("s_branch M_h%de" % h)
            A.label("M_h%db" % h)
            v1_ = vm.clone(); (kpart, vpart)[h](v1_, iV[1])
            A.label("M_h%de" % h)
            assert v0_.n == v1_.n
            vm.n = v0_.n; vm.done = min(v0_.done, v1_.done)
            return vm.n
        A.c("rows 0..15 of this workgroup -> tiles 0..3 of the quarter")
        lastA1 = half(0)
        self.stamp("a1st")
        for g in G2:
            for j, x in enumerate(ldg(g)): idx[(g, j)] = vm.op(x)
        setup2()
        A.c("rows 16..31 -> tiles 4..7")
        lastA2 = half(1)
        self.stamp("a2st")
        for g in G3:
            for j, x in enumerate(ldg(g)): idx[(g, j)] = vm.op(x)
        pub = [0]
        def need(k):
            while pub[0] < (1 if self.pub2late else 2) and k > (lastA1, lastA2)[pub[0]]:
                vm.wait((lastA1, lastA2)[pub[0]])
                if self.force != "timeout": self.publish(pub[0], "M_pub%d" % pub[0])
                self.stamp(("a1pub", "a2pub")[pub[0]])
                pub[0] += 1
            vm.wait(k)
        self.kv_out_addrs(1, S_T, 3, S_WK)
        if not self.up3: setup3()
        def pubA1():
            if pub[0] == 0:
                vm.wait(lastA1)
                if self.force != "timeout": self.publish(0, "M_pub0")
                self.stamp("a1pub", wait=True)
                pub[0] = 1
        iP = [None]; iB = []
        lvb = self.ld_v(1)
        def vbissue():
            if iP[0] is None: iP[0] = vm.op(self.poll_instr())
            for x in lvb[len(iB):]: iB.append(vm.op(x))
        def pollat(at):
            if at == self.ppos: iP[0] = vm.op(self.poll_instr())
        def item(g):
            it = int(g[1]); n = len(ldg(g))
            if n > 2:
                need(idx[(g, n - 3)])
                self.do_tab(it, QTAB if (g[0] == "q" and self.tab != "shared") else KTAB)
            need(idx[(g, n - 1)])
            if self.vbat == "spread" and g[0] == "q":
                for x in lvb[len(iB):min(self.vbpre, len(iB) + 2)]: iB.append(vm.op(x))
            if g == self.vbat:
                for x in lvb[:self.vbpre]: iB.append(vm.op(x))
            pollat(g)
            if self.vbpos == g: vbissue()
            (self.do_q if g[0] == "q" else self.do_k)(it)
            if g[0] == "k" and self.kst == "early": vm.op(self.st_k(it))
        if self.vbat == "a2":
            for x in lvb[:self.vbpre]: iB.append(vm.op(x))
        A.c("q rows -> LDS")
        for g in seq[:4]: item(g)
        if self.pubpos == "pre": pubA1()
        KF, SM0 = VRA + 16, VRA
        if self.tab in ("half", "full"): qaddrs()
        A("s_waitcnt lgkmcnt(0)")
        A("s_barrier")
        self.stamp("qbar", wait=True)
        A.c("q fragments -> a[128:191]; first row shifts from four keys of this workgroup")
        rd = []
        for ks in range(4):
            rd.append("ds_read_b128 %s, v%d offset:%d" % (vr(KF + 4 * ks, 4), QA + 4, ks * 1024))
            for b in range(4): rd.append("ds_read_b128 %s, v%d offset:%d" % (ar(A_Q + (b * 4 + ks) * 4, 4), QA + b, ks * 1024))
        for x in rd[:15]: A(x)
        A("s_waitcnt lgkmcnt(10)")
        for x in rd[15:]: A(x)
        if self.pubpos == "rd": pubA1()
        if self.vbpos == "bar": vbissue()
        for ks in range(4):
            if ks: A("s_waitcnt lgkmcnt(%d)" % (15 - 5 * ks))
            for b in range(4):
                d = vr(SM0 + 4 * b, 4)
                A(self.mfma(d, vr(KF + 4 * ks, 4), ar(A_Q + (b * 4 + ks) * 4, 4), d if ks else "0"))
        pubA1()
        pollat("mf")
        if self.vbpos == "mf": vbissue()
        if self.kunder: item("k2")
        else: A("s_nop 7")
        for b in range(4):
            x, d = SM0 + 4 * b, V_NEGM + 4 * b
            A("v_min3_f32 v%d, -v%d, -v%d, -v%d" % (d, x, x + 1, x + 2))
        for b in range(4): A("v_min_f32_e64 v%d, v%d, -v%d" % (V_NEGM + 4 * b, V_NEGM + 4 * b, SM0 + 4 * b + 3))
        for b in range(4):
            for k in range(1, 4): A("v_mov_b32 v%d, v%d" % (V_NEGM + 4 * b + k, V_NEGM + 4 * b))
        self.stamp("m0")
        pollat("m0")
        if self.vbpos == "m0": vbissue()
        A.c("rows 32..63 -> tiles 8..15 (stored once the tile stream is running)")
        if not self.kunder: item("k2")
        item("k3")
        nf = min(self.vfirst, self.vbpre // 2)
        if nf and self.pub2late:
            need(lastA2)
            if self.force != "timeout": self.publish(1, "M_pub1")
        for p in range(nf):
            if self.vbpos == "v%d" % p: vbissue()
            need(iB[2 * p + 1])
            self.do_vpair(1, p)
        vbissue()
        need(iP[0])
        assert vm.done >= lastA2
        self.stamp("chk")
        self.check_flags(0, bad="M_late1")
        gl = {}
        P0 = min(PRE, self.P0)
        PA = P0 if self.PA is None else self.PA
        for g in range(P0):
            if g == PA: A("s_barrier")
            gl[g] = self.emit_load(g, vm)
            if self.gap and g + 1 < P0: A("s_nop %d" % (self.gap - 1))
        if self.kst == "p0":
            for it in (2, 3): vm.op(self.st_k(it))
        if not nf and self.pub2late and self.force != "timeout": self.publish(1, "M_pub1")
        for p in range(nf, 4):
            vm.wait(iB[2 * p + 1])
            self.do_vpair(1, p)
        A.label("M_k0")
        rest = list(range(P0, PRE))
        bst = ([] if self.kst else [self.st_k(2), self.st_k(3)]) + self.st_v(1)
        if self.vst == "k0":
            for x in bst: vm.op(x)
        if self.prio == "rank":
            A("s_mov_b64 exec, 1")
            A("ds_add_rtn_u32 v%d, v%d, v%d offset:16" % (V_FV, V_CA, V_ONE))
            A("s_mov_b64 exec, -1")
        vm.wait(gl[3])
        if self.prio == "rank":
            A("s_waitcnt lgkmcnt(0)")
            A("v_readfirstlane_b32 s58, v%d" % V_FV)
            A("s_nop 2")
            for w in range(1, 4):
                A("s_cmp_eq_u32 s58, %d" % w)
                A("s_cbranch_scc0 M_rk%d" % w)
                A("s_setprio %d" % w)
                A.label("M_rk%d" % w)
        self.stamp("k0")
        for i, x in enumerate(self.qk_list(0)):
            if i == 4: vm.wait(gl[7])
            A(x)
            if rest:
                g = rest.pop(0); gl[g] = self.emit_load(g, vm)
        while rest:
            g = rest.pop(0); gl[g] = self.emit_load(g, vm)
        A.c("uncounted from here on (only make the loop's waits stricter): flag sample, last 32 rows")
        A(self.poll_instr())
        if self.vst != "k0":
            for x in bst: A(x)
        A("s_nop 2")
        A.c("slot n: K Q^T of unit n+1, exp/pack of unit n, P V of unit n-1 (unit = 32 keys x 16 q rows), four fragment loads")
        A.label("M_go")
        if self.prio == "wave":
            for w in range(1, 4):
                A("s_cmp_eq_u32 s3, %d" % w)
                A("s_cbranch_scc0 M_pr%d" % w)
                A("s_setprio %d" % w)
                A.label("M_pr%d" % w)
        for n in range(0, 5): self.gen_slot(n)
        assert PRE <= 23 and PRE + 4 * 21 <= 128
        A("s_mov_b32 s%d, 7" % S_CNT)
        A("s_cmp_lg_u32 s%d, 0" % S_STAGE)
        A("s_cbranch_scc1 M_loop")
        A("s_mov_b32 s%d, 1" % S_CNT)
        self.publish(2, "M_pub2")
        self.check_flags(1, bad="M_slow1")
        self.stamp("loopstart")
        A.raw(".p2align %d" % self.lal)
        for _ in range(self.lpad): A("s_nop 0")
        A.label("M_loop")
        for n in range(5, 12): self.gen_slot(n)
        self.gen_slot(12, last=["s_sub_u32 s%d, s%d, 1" % (S_CNT, S_CNT), "s_cmp_lg_u32 s%d, 0" % S_CNT])
        A("s_cbranch_scc1 M_loop")
        A("s_cmp_lt_u32 s%d, 2" % S_STAGE)
        A("s_cbranch_scc0 M_tail")
        A("s_add_u32 s%d, s%d, 1" % (S_STAGE, S_STAGE))
        A("s_cmp_eq_u32 s%d, 1" % S_STAGE)
        A("s_cbranch_scc0 M_hook2")
        self.stamp("h1")
        A("s_mov_b32 s%d, 1" % S_CNT)
        A(self.poll_instr())
        A("s_branch M_loop")
        A.label("M_hook2")
        self.stamp("h2")
        A("s_mov_b32 s%d, 5" % S_CNT)
        self.check_flags(2, ok="M_loop")
        A("s_branch M_slow2")
        A.label("M_tail")
        self.stamp("exit")
        self.epilogue()
        self.finish_debug()
        A.label("M_end")
        A("s_endpgm")

        A.label("M_late1")
        if PA < P0: A("s_barrier")
        if not nf and self.pub2late and self.force != "timeout": self.publish(1, "M_pub1l")
        A("s_waitcnt vmcnt(%d)" % (4 if self.kst == "early" and self.vbpos == "k2" else 2))
        A(self.poll_instr())
        for p in range(nf, 3): self.do_vpair(1, p)
        A("s_add_u32 s%d, s%d, 1" % (S_NPOLL, S_NPOLL))
        A("s_waitcnt vmcnt(0)")
        self.check_flags(0, bad="M_slow0")
        A.label("M_late3")
        for g in range(P0): self.emit_load(g)
        if self.kst == "p0":
            for it in (2, 3): A(self.st_k(it))
        self.do_vpair(1, 3)
        A("s_branch M_k0")
        self.slow_poll("M_slow0", 0, "M_late3", "M_self_a")
        self.slow_poll("M_slow1", 1, "M_loop", "M_self")
        self.slow_poll("M_slow2", 2, "M_loop", "M_self")
        A.label("M_codeend")
        A.label("M_vote")
        A("ds_write_b32 v%d, v%d offset:12" % (V_CA, V_ONE))
        A("s_branch M_voted")
        A.c("hand-off unavailable (producer on another die, or not running yet): this wave dequantises its own KV range")
        A.label("M_self_a")
        self.do_vpair(1, 3)
        for x in [self.st_k(2), self.st_k(3)] + self.st_v(1): A(x)
        A("s_waitcnt vmcnt(0) lgkmcnt(0)")
        self.publish(2, "M_pub2s")
        A.label("M_self")
        A("s_waitcnt vmcnt(0) lgkmcnt(0)")
        A("s_mov_b32 s60, 0")
        A.label("M_selfloop")
        A("s_lshr_b32 s%d, s60, 2" % S_FT)
        A("s_lshl_b32 s56, s3, 3")
        A("s_add_u32 s%d, s%d, s56" % (S_FT, S_FT))
        A("s_and_b32 s%d, s60, 3" % S_FW)
        A("s_xor_b32 s%d, s%d, 2" % (S_FWK, S_FW))
        self.kv_in_addrs(S_FT, S_FW, S_FWK)
        for x in self.ld_scales() + self.ld_v(0) + self.ld_v(1) + sum((self.ld_k(it, True) for it in range(4)), []): A(x)
        if self.tab == "calc": self.calc_tabs([0, 1, 2, 3])
        self.kv_out_addrs(0, S_FT, S_FW, S_FWK)
        A("s_waitcnt vmcnt(0)")
        self.do_scales()
        A("s_waitcnt lgkmcnt(0)")
        self.kv_out_addrs(1, S_FT, S_FW, S_FWK)
        for X in range(2):
            for p in range(4): self.do_vpair(X, p)
            for x in self.st_v(X): A(x)
        for it in range(4):
            if self.tab != "calc": self.do_tab(it, KTAB)
            self.do_k(it)
            A(self.st_k(it))
        A("s_waitcnt vmcnt(0)")
        A("s_add_u32 s60, s60, 1")
        A("s_cmp_lt_u32 s60, 32")
        A("s_cbranch_scc1 M_selfloop")
        A("s_branch M_restart")
        A.c("true row maxima over all keys (each wave scans its range, LDS joins them), then redo the pass")
        A.label("M_fallback")
        A("s_waitcnt vmcnt(0) lgkmcnt(0)")
        A("s_mov_b32 s%d, 1" % S_RETRY)
        A("s_mov_b32 s%d, 0" % S_SOFF)
        for b in range(4): A("v_mov_b32 v%d, 0xff800000" % (V_TM + b))
        A.label("M_fbloop")
        for g in range(8): A(self.load_instr(g))
        A("s_waitcnt vmcnt(0)")
        for u in range(2):
            for ks in range(4):
                for b in range(4):
                    d = vr(V_S + 4 * b, 4)
                    A(self.mfma(d, ar(self.kfrag(0, u * 4 + ks), 4), ar(A_Q + (b * 4 + ks) * 4, 4), d if ks else "0"))
            A("s_nop 7")
            for b in range(4):
                s = V_S + 4 * b
                A("v_max3_f32 v%d, v%d, v%d, v%d" % (V_TM + b, V_TM + b, s, s + 1))
                A("v_max3_f32 v%d, v%d, v%d, v%d" % (V_TM + b, V_TM + b, s + 2, s + 3))
            A("s_nop 1")
        A("s_add_u32 s%d, s%d, 0x4000" % (S_SOFF, S_SOFF))
        A("s_cmp_lt_u32 s%d, 0x40000" % S_SOFF)
        A("s_cbranch_scc1 M_fbloop")
        A("s_lshl_b32 s58, s3, 8")
        A("s_add_u32 s58, s58, %d" % LDS_Q)
        A("v_lshl_add_u32 v%d, v%d, 2, s58" % (V_P + 3, V_LANE))
        for b in range(3): A("v_xor_b32 v%d, 0x%x, v%d" % (V_P + b, (b + 1) << 8, V_P + 3))
        A("s_lshl_b32 s58, s3, 10")
        for b in range(4):
            A("v_add_u32 v%d, s58, v%d" % (V_P + 4 + b, V_P + b))
            A("ds_write_b32 v%d, v%d" % (V_P + 4 + b, V_TM + b))
        A("s_waitcnt lgkmcnt(0)")
        A("s_barrier")
        for b in range(4):
            for w in range(4): A("ds_read_b32 v%d, v%d offset:%d" % (V_S + 4 * b + w, V_P + b, w * 1024))
            A("s_waitcnt lgkmcnt(0)")
            A("v_max3_f32 v%d, v%d, v%d, v%d" % (V_TM + b, V_S + 4 * b, V_S + 4 * b + 1, V_S + 4 * b + 2))
            A("v_max_f32 v%d, v%d, v%d" % (V_TM + b, V_TM + b, V_S + 4 * b + 3))
        self.finishmax()
        A.label("M_restart")
        A("s_mov_b32 s%d, 2" % S_STAGE)
        A("s_mov_b32 s%d, s%d" % (S_SOFF, S_ROT))
        A("s_mov_b32 s%d, 0" % S_J)
        for g in range(PRE): self.emit_load(g)
        A("s_waitcnt vmcnt(0)")
        for x in self.qk_list(0): A(x)
        A("s_nop 7")
        A("s_branch M_go")
        A.raw('.section .rodata,"a"')
        A.raw(".p2align 6")
        A.raw(".amdhsa_kernel %s" % MAINK)
        A.raw("  .amdhsa_next_free_vgpr 512")
        A.raw("  .amdhsa_next_free_sgpr 102")
        A.raw("  .amdhsa_accum_offset 256")
        A.raw("  .amdhsa_group_segment_fixed_size 0")
        A.raw("  .amdhsa_kernarg_size 112")
        A.raw("  .amdhsa_user_sgpr_count 2")
        A.raw("  .amdhsa_user_sgpr_kernarg_segment_ptr 1")
        A.raw("  .amdhsa_system_sgpr_workgroup_id_x 1")
        A.raw("  .amdhsa_float_denorm_mode_32 3")
        A.raw(".end_amdhsa_kernel")
        return A.text()

    def epilogue(self):
        A = self.A
        PK = 196
        OWN = V_O + 96; LS = V_L + 12
        def pack(b):
            r_ = []
            for F in range(4):
                t = PK + 16 * (b & 1) + 4 * F
                o = V_O + (b * 8 + 2 * F) * 4
                r_ += ["v_cvt_pk_bf16_f32 v%d, v%d, v%d" % (t + j, o + 2 * j, o + 2 * j + 1) for j in range(4)]
                r_.append("ds_write_b128 v%d, %s offset:%d" % (V_XA + b, vr(t, 4), (b + 1) * 4096 + F * 1024))
            r_.append("ds_write_b128 v%d, %s offset:%d" % (V_XA + b, vr(V_L + 4 * b, 4), (b + 1) * 1024))
            x = V_L + 4 * b
            r_.append("v_add_f32 v%d, v%d, v%d" % (V_TM + 2 * b, x, x + 2))
            r_.append("v_add_f32 v%d, v%d, v%d" % (V_TM + 2 * b + 1, x + 1, x + 3))
            return r_
        q = []
        def extra(n, g):
            k = {62: (2 if g % 4 == 2 or g == 16 else 1 if g % 4 == 3 else self.xe), 63: self.x63, 64: 2}[n]
            for _ in range(k):
                if q and (len(q) > len(pack(0)) or g >= (2 if n == 62 else 3)): A(q.pop(0))
        self.gen_slot(61)
        q += pack(0)
        self.gen_slot(62, extra=extra)
        A("s_nop 0")
        q += pack(1)
        self.gen_slot(63, extra=extra)
        A("s_nop 1")
        q += pack(2)
        self.gen_slot(64, extra=extra)
        self.stamp("loopend")
        n_q = len(q)
        while q: A(q.pop(0))
        if n_q < 6: A("s_nop %d" % (5 - n_q))
        A("v_pk_add_f32 %s, %s, %s" % (vr(V_TM, 2), vr(V_TM, 2), vr(V_TM + 2, 2)))
        A("v_pk_add_f32 %s, %s, %s" % (vr(V_TM, 2), vr(V_TM, 2), vr(V_TM + 4, 2)))
        A("v_pk_add_f32 %s, %s, %s" % (vr(V_TM + 6, 2), vr(LS, 2), vr(LS + 2, 2)))
        A("v_pk_add_f32 %s, %s, %s" % (vr(V_TM, 2), vr(V_TM, 2), vr(V_TM + 6, 2)))
        A("s_mov_b32 s58, 0x%x" % f2u(2.0 ** self.thresh))
        A("v_add_f32 v%d, v%d, v%d" % (V_TM, V_TM, V_TM + 1))
        A("v_cmp_ngt_f32 vcc, s58, v%d" % V_TM)
        A("s_nop 4")
        A.c("a row sum out of range: the shift was unsafe, all four waves redo the pass with the true row maxima")
        A("s_cbranch_vccnz M_vote")
        A.label("M_voted")
        A("s_waitcnt lgkmcnt(0)")
        A("s_barrier")
        self.stamp("bar2", wait=True)
        RD = V_O; RL = V_O + 48; FL = V_O + 60
        n_l = [0]; dn = [0]
        def L(x): A(x); n_l[0] += 1; return n_l[0]
        def W(i):
            if i > dn[0]:
                A("s_waitcnt lgkmcnt(%d)" % (n_l[0] - i)); dn[0] = i
        reads = [(("o", F, k), "ds_read_b128 %s, v%d offset:%d" % (vr(RD + (F * 3 + k - 1) * 4, 4), V_XB, k * 4096 + F * 1024)) for F in range(4) for k in range(1, 4)]
        lr = [(("l", k), "ds_read_b128 %s, v%d offset:%d" % (vr(RL + 4 * (k - 1), 4), V_XB, k * 1024)) for k in range(1, 4)]
        reads = reads[:3] + [("fl", "ds_read_b32 v%d, v%d offset:12" % (FL, V_CA))] + lr + reads[3:]
        ix = {}
        def issue(n):
            for _ in range(n):
                if reads:
                    k_, x = reads.pop(0); ix[k_] = L(x)
        def st(E, r): return "buffer_store_dwordx2 %s, v%d, s[%d:%d], 0 offen offset:%d %s" % (vr(PK + 4 * r + 2 * E, 2), V_OFF, S_OSRD, S_OSRD + 3, r * 256 + E * 128, self.out_flags)
        def fin(F, pk):
            if pk: r_ = ["v_pk_mul_f32 %s, %s, %s" % (vr(OWN + 8 * F + 2 * j, 2), vr(OWN + 8 * F + 2 * j, 2), vr(LS + 2 * (j & 1), 2)) for j in range(4)]
            else: r_ = ["v_mul_f32 v%d, v%d, v%d" % (OWN + 8 * F + j, LS + (j & 3), OWN + 8 * F + j) for j in range(8)]
            for r in range(4):
                r_.append("v_cvt_pk_bf16_f32 v%d, v%d, v%d" % (PK + 4 * r + F, OWN + 8 * F + r, OWN + 8 * F + 4 + r))
                if self.wide:
                    if F == 3: r_.append("buffer_store_dwordx4 %s, v%d, s[%d:%d], 0 offen offset:%d %s" % (vr(PK + 4 * r, 4), V_OFF, S_OSRD, S_OSRD + 3, r * 256, self.out_flags))
                elif F & 1: r_.append(st(F >> 1, r))
            return r_
        issue(self.rd0)
        side = []
        for F in range(4):
            if F == 1:
                W(ix[("l", 3)])
                A("v_cmp_lt_u32 vcc, s%d, v%d" % (S_RETRY, FL))
                for k in range(3): side += ["v_add_f32 v%d, v%d, v%d" % (LS + j, LS + j, RL + 4 * k + j) for j in range(4)]
                side += ["v_rcp_f32 v%d, v%d" % (LS + r, LS + r) for r in range(4)]
                side += ["s_cbranch_vccnz M_fallback"]
            if F >= 2: side += fin(F - 2, False)
            for k in range(1, 4):
                W(ix[("o", F, k)])
                src = vr(RD + (F * 3 + k - 1) * 4, 4)
                for j in range(2):
                    d = vr(OWN + (2 * F + j) * 4, 4)
                    A(self.mfma(d, ar(A_SEL + 2 - 2 * j, 4), src, d))
                    issue(1)
                    for _ in range(3):
                        if side: A(side.pop(0))
        for x in side: A(x)
        self.stamp("fin")
        for x in fin(2, True) + fin(3, True): A(x)

    def finish_debug(self):
        A = self.A
        if self.stamps:
            self.stamp("stiss")
            A("s_waitcnt vmcnt(0)")
            self.stamp("end")
            A("s_lshl_b32 s58, s2, 2")
            A("s_add_u32 s58, s58, s3")
            A("s_lshl_b32 s58, s58, 8")
            A("s_add_u32 s58, s58, 0x%x" % STAMP)
            A("s_add_u32 s4, s%d, s58" % S_WS)
            A("s_addc_u32 s5, s%d, 0" % (S_WS + 1))
            A("s_waitcnt lgkmcnt(0)")
            A("v_mov_b32 v8, 0")
            A("s_mov_b64 exec, 1")
            for i in range(self.NST):
                for k in range(4): A("v_mov_b32 v%d, s%d" % (12 + k, 64 + 4 * i + k))
                A("global_store_dwordx4 v8, v[12:15], s[4:5] offset:%d" % (16 * i))
                A("s_nop 1")
            A("v_mov_b32 v12, s%d" % S_NPOLL)
            A("v_mov_b32 v13, s%d" % S_RETRY)
            A("global_store_dwordx2 v8, v[12:13], s[4:5] offset:240")
        if self.cal:
            A("s_cmp_lg_u32 s2, %d" % self.cal[3])
            A("s_cbranch_scc1 M_end")
            A("s_memrealtime s[6:7]")
            A("s_waitcnt lgkmcnt(0)")
            if self.cal[0] == "fixed":
                A("s_add_u32 s58, s64, %d" % (self.cal[1] * 100))
                A("s_sub_u32 s58, s58, s6")
                A("s_max_i32 s58, s58, 0")
            elif self.cal[0] == "npoll":
                A("s_mul_i32 s58, s%d, 1000" % S_NPOLL)
            else:
                A("s_sub_u32 s58, s%d, s%d" % (64 + 4 * self.cal[2], 64 + 4 * self.cal[1]))
                A("s_mul_i32 s58, s58, %d" % (self.cal[4] if len(self.cal) > 4 else 10))
            A("s_min_u32 s58, s58, 100000")
            A("s_add_u32 s58, s58, s6")
            A.label("M_spin")
            A("s_memrealtime s[6:7]")
            A("s_waitcnt lgkmcnt(0)")
            A("s_sub_u32 s59, s6, s58")
            A("s_cmp_lt_i32 s59, 0")
            A("s_cbranch_scc1 M_spin")

def gen(**kw): return Gen(**kw).gen()

if __name__ == "__main__":
    open(sys.argv[1], "w").write(gen())
```
